```python
import torch

def _softmax(x, axis=-1):
    return torch.softmax(x, dim=axis)
def _gelu(x):
    return torch.nn.functional.gelu(x, approximate="tanh")
def _silu(x):
    return torch.nn.functional.silu(x)
def _sigmoid(x):
    return torch.sigmoid(x)
def _layernorm(x, axis=-1, eps=1e-5):
    m = x.mean(dim=axis, keepdim=True)
    v = x.var(dim=axis, keepdim=True, unbiased=False)
    return (x - m) / torch.sqrt(v + eps)
def _scatter_add(tgt, idx, src, axis=0):
    return tgt.clone().index_add_(axis, idx, src)
def _segment_sum(src, seg, n):
    out = torch.zeros((n,) + src.shape[1:], dtype=src.dtype)
    return out.index_add_(0, seg, src)
def _pad(x, pw):
    flat = tuple(v for pair in reversed(pw) for v in pair)
    return torch.nn.functional.pad(x, flat)

kernel_name = 'concat_heads__mha_block__ssm_conv_s4d__prompt'

def setup_inputs():

    _w = (lambda a: (lambda t: t.to(torch.bfloat16) if t.is_floating_point() else t)(torch.as_tensor(a)))
    def _A_setup():
        B, S, D, H = 1, 2048, 512, 32
        return {
            "x": _w((lambda *s: torch.randn(*s, dtype=torch.bfloat16) * 0.2)(B, S, D)),
            "wqkv": _w((lambda *s: torch.randn(*s, dtype=torch.bfloat16) * 0.2)(D, 3 * D)),
            "wo": _w((lambda *s: torch.randn(*s, dtype=torch.bfloat16) * 0.05)(D, D)),
        }
    _A_in = _A_setup()

    def _B_setup():
        Bsz, L, D, N = 1, 2048, 512, 128
        return {
            "u": _w((lambda *s: torch.randn(*s, dtype=torch.bfloat16) * 0.05)(Bsz, L, D)),
            "log_A_real": _w((lambda *s: torch.randn(*s, dtype=torch.bfloat16) * 6.4)(D, N) * 0.5),
            "A_imag": _w((lambda *s: torch.randn(*s, dtype=torch.bfloat16) * 0.05)(D, N) * 3.14),
            "C_real": _w((lambda *s: torch.randn(*s, dtype=torch.bfloat16) * 0.4)(D, N) / N ** 0.5),
            "C_imag": _w((lambda *s: torch.randn(*s, dtype=torch.bfloat16) * 0.4)(D, N) / N ** 0.5),
            "log_dt": _w((lambda *s: torch.randn(*s, dtype=torch.bfloat16) * 0.05)(D) * 0.5 - 4.0),
            "D_skip": _w((lambda *s: torch.randn(*s, dtype=torch.bfloat16) * 0.05)(D)),
        }
    _B_in = _B_setup()

    return {
        "A_x": _A_in["x"],
        "A_wqkv": _A_in["wqkv"],
        "A_wo": _A_in["wo"],
        "B_u": _B_in["u"],
        "B_log_A_real": _B_in["log_A_real"],
        "B_A_imag": _B_in["A_imag"],
        "B_C_real": _B_in["C_real"],
        "B_C_imag": _B_in["C_imag"],
        "B_log_dt": _B_in["log_dt"],
        "B_D_skip": _B_in["D_skip"],
    }

def reference(A_x, A_wqkv, A_wo, B_u, B_log_A_real, B_A_imag, B_C_real, B_C_imag, B_log_dt, B_D_skip):
    def _A_ref(x, wqkv, wo):
        B, S, D = x.shape
        H = 32
        Dh = D // H
        qkv = (lambda x, *d: x.permute(*d))((x @ wqkv).reshape(B, S, 3, H, Dh), 2, 0, 3, 1, 4)
        q, k, v = qkv[0], qkv[1], qkv[2]
        scores = torch.einsum("bhqd,bhkd->bhqk", q, k) * (Dh ** -0.5)
        p = _softmax(scores, axis=-1)
        o = torch.einsum("bhqk,bhkd->bhqd", p, v)
        return (lambda x, *d: x.permute(*d))(o, 0, 2, 1, 3).reshape(B, S, D) @ wo

    def _B_ref(u, log_A_real, A_imag, C_real, C_imag, log_dt, D_skip):
        L = u.shape[1]
        dt = torch.exp(log_dt)
        A = -torch.exp(log_A_real) + 1j * A_imag
        C = (C_real + 1j * C_imag) * dt[:, None]
        pos = (lambda x, dt: x.to(dt))(torch.arange(L), log_dt.dtype)
        P = torch.exp((A * dt[:, None])[:, :, None] * pos[None, None, :])
        K = 2.0 * torch.einsum("dn,dnl->dl", C, P).real
        L2 = 2 * L
        u_t = (lambda x, *d: x.permute(*d))(u, 0, 2, 1)
        Kf = (lambda x, *a, **k: torch.fft.rfft(x.float(), *a, **k))(K, L2)
        Uf = (lambda x, *a, **k: torch.fft.rfft(x.float(), *a, **k))(u_t, L2)
        y = (lambda x, *a, **k: torch.fft.irfft(x, *a, **k).to(torch.bfloat16))(Uf * Kf[None, :, :], L2)[:, :, :L]
        y = (lambda x, *d: x.permute(*d))(y, 0, 2, 1)
        return y + u * D_skip[None, None, :]

    a = _A_ref(A_x, A_wqkv, A_wo)
    b = _B_ref(B_u, B_log_A_real, B_A_imag, B_C_real, B_C_imag, B_log_dt, B_D_skip)
    return torch.concatenate([a, b], axis=-1)
```

```python
class Asm:
    def __init__(self):
        self.L = []
        self.uid = 0
    def __call__(self, s, c=None):
        for line in s.split('\n'):
            line = line.strip()
            if line:
                self.L.append('    ' + line + (('    ; ' + c) if c else ''))
    def label(self, name):
        self.L.append(name + ':')
    def comment(self, s):
        self.L.append('    ; ' + s)
    def newlabel(self, p='L'):
        self.uid += 1
        return '%s_%d' % (p, self.uid)
    def text(self):
        return '\n'.join(self.L) + '\n'
    def nop(self, n):
        while n > 0:
            k = min(n, 16)
            self('s_nop %d' % (k - 1))
            n -= k

def vr(a, n=1):
    return 'v%d' % a if n == 1 else 'v[%d:%d]' % (a, a + n - 1)
def sr(a, n=1):
    return 's%d' % a if n == 1 else 's[%d:%d]' % (a, a + n - 1)
def ar(a, n=1):
    return 'a%d' % a if n == 1 else 'a[%d:%d]' % (a, a + n - 1)

def srd(A, d, base, size):
    A('s_mov_b32 s%d, s%d' % (d, base))
    A('s_and_b32 s%d, s%d, 0xffff' % (d + 1, base + 1))
    A('s_mov_b32 s%d, 0x%x' % (d + 2, size))
    A('s_mov_b32 s%d, 0x20000' % (d + 3))

def kernel_desc(name, vgpr, sgpr=96, accum=None, extra=''):
    if accum is None:
        accum = (vgpr + 3) // 4 * 4
    return '''.amdhsa_kernel %s
  .amdhsa_next_free_vgpr %d
  .amdhsa_next_free_sgpr %d
  .amdhsa_accum_offset %d
  .amdhsa_group_segment_fixed_size 0
  .amdhsa_kernarg_size 104
  .amdhsa_user_sgpr_count 2
  .amdhsa_user_sgpr_kernarg_segment_ptr 1
  .amdhsa_system_sgpr_workgroup_id_x 1
%s.end_amdhsa_kernel
''' % (name, vgpr, sgpr, accum, extra)
```

```python
import sys, math, struct
from asmlib import *

NAME = 'concat_heads__mha_block__ssm_conv_s4d__prompt'
WS_QF = 0
WS_KF = 2 << 20
WS_VF = 4 << 20
WS_OF = 6 << 20
WS_WOF = 8 << 20
WS_KR = 9 << 20
WS_SIZE = 256 << 20
KA_X, KA_WQKV, KA_WO, KA_U, KA_LAR, KA_AI, KA_CR, KA_CI, KA_LDT, KA_DSK, KA_OUT, KA_DBG, KA_WS = [8 * i for i in range(13)]

def f2u(f):
    return struct.unpack('<I', struct.pack('<f', f))[0]
LOG2E = 1.4426950408889634
QSCALE = 0.25 * LOG2E

NSLOT = 5
SLOT = 14336
NCH = 16

def k1_gemm(A):
    A.label('k1_gemm')
    A('s_load_dwordx4 s[4:7], s[0:1], %d' % KA_X)
    A('s_load_dwordx2 s[8:9], s[0:1], %d' % KA_WS)
    A('v_lshrrev_b32 v2, 6, v0')
    A('v_and_b32 v1, 63, v0')
    A('s_and_b32 s24, s2, 7')
    A('v_readfirstlane_b32 s33, v2')
    A('s_lshr_b32 s25, s2, 3')
    A('s_and_b32 s26, s24, 3')
    A('s_lshl_b32 s26, s26, 2')
    A('s_and_b32 s27, s25, 3')
    A('s_add_u32 s26, s26, s27')
    A('s_lshr_b32 s27, s24, 2')
    A('s_lshl_b32 s27, s27, 3')
    A('s_lshr_b32 s28, s25, 2')
    A('s_add_u32 s27, s27, s28')
    A('s_and_b32 s28, s27, 7')
    A('s_lshl_b32 s28, s28, 1')
    A('s_and_b32 s29, s26, 3')
    A('s_lshl_b32 s29, s29, 2')
    A('s_add_u32 s28, s28, s29')
    A('s_and_b32 s28, s28, 15')
    TB, HP, ROT, W = 26, 27, 28, 33
    A('s_lshl_b32 s29, s33, 11')
    A('s_mul_i32 s30, s33, 1536')
    A('s_add_u32 s30, s30, 8192')
    MX, MW = 29, 30
    A('s_mov_b32 s34, -1')
    A('s_mov_b32 s35, 0')
    A('s_lshl_b32 s31, s26, 7')
    A('s_lshl_b32 s32, s33, 5')
    A('s_add_u32 s31, s31, s32')
    A('v_lshrrev_b32 v2, 2, v1')
    A('v_add_u32 v2, s31, v2')
    A('v_lshlrev_b32 v2, 10, v2')
    A('v_lshrrev_b32 v3, 4, v1')
    A('v_xor_b32 v3, v3, v1')
    A('v_and_b32 v3, 3, v3')
    A('v_lshlrev_b32 v3, 4, v3')
    A('v_add_u32 v2, v2, v3')
    A('v_add_u32 v3, 16384, v2')
    A('s_mul_i32 s31, s33, 1536')
    A('v_lshlrev_b32 v9, 4, v1')
    A('v_add_u32 v9, s31, v9')
    A('s_lshl_b32 s32, s27, 6')
    A('s_movk_i32 s36, 3072')
    for (dst, add) in ((4, 0), (5, 1024)):
        if add:
            A('v_add_u32 v9, %d, v9' % add)
        A('v_bfe_u32 v10, v9, 6, 5')
        A('v_mul_lo_u32 v10, v10, s36')
        A('v_lshrrev_b32 v11, 11, v9')
        A('v_lshlrev_b32 v11, 10, v11')
        A('v_and_b32 v12, 48, v9')
        A('v_add3_u32 v%d, v10, v11, v12' % dst)
        A('v_add_u32 v%d, s32, v%d' % (dst, dst))
    A('v_and_b32 v9, 31, v1')
    A('v_lshrrev_b32 v10, 5, v1')
    A('v_bfe_u32 v11, v1, 2, 2')
    A('v_xor_b32 v11, v11, v10')
    A('v_lshlrev_b32 v11, 4, v11')
    A('v_lshlrev_b32 v9, 6, v9')
    A('v_add3_u32 v6, v9, v11, s29')
    A('v_xor_b32 v7, 32, v6')
    A('v_lshrrev_b32 v9, 5, v1')
    A('v_lshlrev_b32 v9, 3, v9')
    A('v_bfe_u32 v10, v1, 2, 2')
    A('v_add_u32 v9, v9, v10')
    A('v_lshlrev_b32 v9, 6, v9')
    A('v_bfe_u32 v10, v1, 4, 1')
    A('v_lshlrev_b32 v10, 5, v10')
    A('v_and_b32 v11, 1, v1')
    A('v_lshlrev_b32 v11, 4, v11')
    A('v_bfe_u32 v12, v1, 1, 1')
    A('v_lshlrev_b32 v12, 3, v12')
    A('v_add3_u32 v9, v9, v10, v11')
    A('v_add_u32 v9, v9, v12')
    A('v_add_u32 v8, 8192, v9')
    for r in range(16, 64):
        A('v_mov_b32 v%d, 0' % r)
    A('s_waitcnt lgkmcnt(0)')
    srd(A, 12, 4, 2048 * 1024)
    srd(A, 16, 6, 512 * 3072)
    srd(A, 20, 8, WS_SIZE)

    def dma(c):
        slot = (c % NSLOT) * SLOT
        A('s_add_u32 s36, s28, %d' % c)
        A('s_and_b32 s36, s36, 15')
        A('s_lshl_b32 s37, s36, 6')
        A('s_mul_i32 s38, s36, 98304')
        A('s_add_u32 m0, s29, %d' % slot)
        A('s_nop 0')
        A('buffer_load_dwordx4 v2, s[12:15], s37 offen lds')
        A('s_add_u32 m0, s29, %d' % (slot + 1024))
        A('s_nop 0')
        A('buffer_load_dwordx4 v3, s[12:15], s37 offen lds')
        A('s_add_u32 m0, s30, %d' % slot)
        A('s_nop 0')
        A('buffer_load_dwordx4 v4, s[16:19], s38 offen lds')
        A('s_add_u32 m0, s30, %d' % (slot + 1024))
        A('s_mov_b64 exec, s[34:35]')
        A('buffer_load_dwordx4 v5, s[16:19], s38 offen lds')
        A('s_mov_b64 exec, -1')

    def reads(c):
        slot = (c % NSLOT) * SLOT
        b = 64 + 32 * (c & 1)
        A('ds_read_b128 %s, v6 offset:%d' % (vr(b, 4), slot))
        for T in range(3):
            o = slot + T * 2048
            A('ds_read_b64_tr_b16 %s, v8 offset:%d' % (vr(b + 8 + T * 8, 2), o))
            A('ds_read_b64_tr_b16 %s, v8 offset:%d' % (vr(b + 8 + T * 8 + 2, 2), o + 256))
        A('ds_read_b128 %s, v7 offset:%d' % (vr(b + 4, 4), slot))
        for T in range(3):
            o = slot + T * 2048 + 1024
            A('ds_read_b64_tr_b16 %s, v8 offset:%d' % (vr(b + 8 + T * 8 + 4, 2), o))
            A('ds_read_b64_tr_b16 %s, v8 offset:%d' % (vr(b + 8 + T * 8 + 6, 2), o + 256))

    def mfmas(c):
        b = 64 + 32 * (c & 1)
        for ks in range(2):
            x = vr(b + 4 * ks, 4)
            for T in range(3):
                wf = vr(b + 8 + T * 8 + 4 * ks, 4)
                acc = vr(16 + 16 * T, 16)
                if T < 2:
                    A('v_mfma_f32_32x32x16_bf16 %s, %s, %s, %s' % (acc, wf, x, acc))
                else:
                    A('v_mfma_f32_32x32x16_bf16 %s, %s, %s, %s' % (acc, x, wf, acc))

    for c in range(NSLOT):
        dma(c)
    A('s_waitcnt vmcnt(%d)' % (4 * (NSLOT - 1)))
    A('s_barrier')
    reads(0)
    for c in range(NCH):
        if c + 1 < NCH:
            last = min(c + NSLOT - 1, NCH - 1)
            A('s_waitcnt vmcnt(%d) lgkmcnt(0)' % (4 * (last - (c + 1))))
            A('s_barrier')
            if c + NSLOT < NCH:
                dma(c + NSLOT)
            reads(c + 1)
        else:
            A('s_waitcnt lgkmcnt(0)')
        mfmas(c)
    A.nop(12)
    A('s_mov_b32 s36, 0x%x' % f2u(QSCALE))
    for r in range(16):
        A('v_mul_f32 v%d, s36, v%d' % (16 + r, 16 + r))
    for T in range(3):
        for i in range(8):
            A('v_cvt_pk_bf16_f32 v%d, v%d, v%d' % (64 + T * 8 + i, 16 + 16 * T + 2 * i, 16 + 16 * T + 2 * i + 1))
    A('s_lshl_b32 s36, s27, 7')
    A('s_lshl_b32 s37, s26, 2')
    A('s_add_u32 s36, s36, s37')
    A('s_add_u32 s36, s36, s33')
    A('s_lshl_b32 s36, s36, 10')
    A('s_add_u32 s37, s36, %d' % (64 * 1024))
    A('v_lshlrev_b32 v9, 4, v1')
    A('buffer_store_dwordx4 v[64:67], v9, s[20:23], s36 offen')
    A('buffer_store_dwordx4 v[68:71], v9, s[20:23], s37 offen')
    A('s_add_u32 s38, s36, %d' % WS_KF)
    A('s_add_u32 s39, s37, %d' % WS_KF)
    A('buffer_store_dwordx4 v[72:75], v9, s[20:23], s38 offen')
    A('buffer_store_dwordx4 v[76:79], v9, s[20:23], s39 offen')
    A('v_bfe_u32 v10, v1, 4, 1')
    A('v_lshlrev_b32 v10, 16, v10')
    A('v_lshrrev_b32 v11, 5, v1')
    A('v_lshlrev_b32 v11, 8, v11')
    A('v_and_b32 v12, 15, v1')
    A('v_lshlrev_b32 v12, 4, v12')
    A('v_add3_u32 v10, v10, v11, v12')
    A('s_add_u32 s38, s36, %d' % WS_VF)
    A('buffer_store_dwordx4 v[80:83], v10, s[20:23], s38 offen')
    A('buffer_store_dwordx4 v[84:87], v10, s[20:23], s38 offen offset:512')
    A('s_endpgm')

KG_REG = 13312
KG_H = 8448
KG_KC = 4 * KG_REG
KG_WO = KG_KC + 2 * 2880

def k1_kgen(A):
    A.label('k1_kgen')
    A('s_sub_u32 s24, s2, 256')
    A('s_load_dwordx8 s[4:11], s[0:1], %d' % KA_LAR)
    A('s_load_dwordx4 s[12:15], s[0:1], %d' % KA_LDT)
    A('s_load_dwordx2 s[16:17], s[0:1], %d' % KA_WS)
    A('s_load_dwordx2 s[18:19], s[0:1], %d' % KA_WO)
    A('v_lshrrev_b32 v2, 6, v0')
    A('v_and_b32 v1, 63, v0')
    A('s_lshl_b32 s25, s24, 2')
    A('v_readfirstlane_b32 s33, v2')
    A('s_waitcnt lgkmcnt(0)')
    A('s_load_dword s26, s[12:13], s25')
    A('s_load_dword s27, s[14:15], s25')
    srd(A, 36, 4, 512 * 256)
    srd(A, 40, 6, 512 * 256)
    srd(A, 44, 8, 512 * 256)
    srd(A, 48, 10, 512 * 256)
    srd(A, 20, 16, WS_SIZE)
    srd(A, 52, 18, 512 * 1024)
    A('s_lshr_b32 s28, s33, 1')
    A('s_lshl_b32 s29, s24, 1')
    A('s_add_u32 s29, s29, s28')
    A('s_lshl_b32 s30, s29, 8')
    A('v_lshlrev_b32 v2, 2, v1')
    A('buffer_load_dword v4, v2, s[36:39], s30 offen')
    A('buffer_load_dword v5, v2, s[40:43], s30 offen')
    A('buffer_load_dword v6, v2, s[44:47], s30 offen')
    A('buffer_load_dword v7, v2, s[48:51], s30 offen')
    lskip = A.newlabel('kg_nowo')
    A('s_cmp_lg_u32 s33, 3')
    A('s_cbranch_scc1 %s' % lskip)
    A('s_and_b32 s31, s24, 15')
    A('s_lshr_b32 s32, s24, 4')
    A('v_lshrrev_b32 v8, 2, v1')
    A('v_lshlrev_b32 v8, 10, v8')
    A('v_and_b32 v9, 3, v1')
    A('v_lshlrev_b32 v9, 4, v9')
    A('v_add_u32 v8, v8, v9')
    A('s_lshl_b32 s34, s32, 15')
    A('s_lshl_b32 s35, s31, 6')
    A('s_add_u32 s34, s34, s35')
    A('s_mov_b32 m0, %d' % KG_WO)
    A('s_add_u32 s35, s34, 16384')
    A('buffer_load_dwordx4 v8, s[52:55], s34 offen lds')
    A('s_mov_b32 m0, %d' % (KG_WO + 1024))
    A('s_nop 0')
    A('buffer_load_dwordx4 v8, s[52:55], s35 offen lds')
    A.label(lskip)
    A('s_mul_i32 s31, s33, %d' % KG_REG)
    A('v_lshlrev_b32 v10, 3, v1')
    A('v_add_u32 v10, s31, v10')
    A('v_and_b32 v11, 15, v1')
    A('v_mul_u32_u24 v11, 528, v11')
    A('v_lshrrev_b32 v12, 4, v1')
    A('v_lshlrev_b32 v12, 4, v12')
    A('v_add3_u32 v11, v11, v12, s31')
    VW, VRD = 10, 11
    A('v_and_b32 v12, 15, v1')
    A('v_lshrrev_b32 v13, 4, v1')
    A('v_lshlrev_b32 v13, 6, v13')
    A('v_add_u32 v12, v12, v13')
    A('v_cvt_f32_u32 v12, v12')
    VB0 = 12
    A('s_mul_i32 s34, s28, 2880')
    A('s_add_u32 s34, s34, %d' % KG_KC)
    SKC = 34
    A('s_waitcnt lgkmcnt(0)')
    A('s_lshl_b32 s35, s28, 4')
    A('s_lshr_b32 s26, s26, s35')
    A('s_lshl_b32 s26, s26, 16')
    A('s_lshr_b32 s27, s27, s35')
    A('s_lshl_b32 s27, s27, 16')

    L2E_HI = f2u(LOG2E)
    L2E_LO = f2u(LOG2E - struct.unpack('<f', struct.pack('<I', L2E_HI))[0])
    LN2 = f2u(math.log(2.0))
    def exp_bf16(dst, src, t0, t1):
        A('v_mul_f32 v%d, 0x%x, v%d' % (t0, L2E_HI, src))
        A('v_mov_b32 v%d, 0x%x' % (t1, L2E_HI))
        A('v_fma_f32 v%d, v%d, v%d, -v%d' % (t1, src, t1, t0))
        A('v_fmac_f32 v%d, 0x%x, v%d' % (t1, L2E_LO, src))
        A('v_exp_f32 v%d, v%d' % (t0, t0))
        A('v_mul_f32 v%d, 0x%x, v%d' % (t1, LN2, t1))
        A('v_fma_f32 v%d, v%d, v%d, v%d' % (t0, t0, t1, t0))
        A('v_cvt_pk_bf16_f32 v%d, v%d, v%d' % (t0, t0, t0))
        A('v_lshlrev_b32 v%d, 16, v%d' % (dst, t0))
    A('v_mov_b32 v13, s26')
    exp_bf16(13, 13, 14, 15)
    VDT = 13
    A('s_waitcnt vmcnt(0)')
    A('v_lshlrev_b32 v16, 16, v4')
    A('v_and_b32 v20, 0xffff0000, v4')
    A('v_lshlrev_b32 v17, 16, v5')
    A('v_and_b32 v21, 0xffff0000, v5')
    A('v_lshlrev_b32 v18, 16, v6')
    A('v_and_b32 v22, 0xffff0000, v6')
    A('v_lshlrev_b32 v19, 16, v7')
    A('v_and_b32 v23, 0xffff0000, v7')
    exp_bf16(16, 16, 14, 15)
    exp_bf16(20, 20, 14, 15)
    for (a2, wr, c) in ((16, 17, 18), (20, 21, 22)):
        A('v_mul_f32 v%d, v%d, v13' % (a2, a2))
        A('v_mul_f32 v%d, 0x%x, v%d' % (a2, f2u(-LOG2E), a2))
        A('v_mul_f32 v%d, v%d, v13' % (wr, wr))
        A('v_mul_f32 v%d, 0x%x, v%d' % (wr, f2u(1.0 / (2 * math.pi)), wr))
        A('v_mul_f32 v%d, v%d, v13' % (c, c))
        A('v_mul_f32 v%d, v%d, v13' % (c + 1, c + 1))
        A('v_add_f32 v%d, v%d, v%d' % (c, c, c))
        A('v_add_f32 v%d, v%d, v%d' % (c + 1, c + 1, c + 1))
    A('v_cmp_eq_u32 vcc, 0, v1')
    A('v_mov_b32 v14, s27')
    A('s_nop 1')
    A('v_cndmask_b32 v14, 0, v14, vcc')
    VDSK = 14
    XA, XB, MA, MB, TA, TB, P = 24, 26, 28, 30, 32, 34, 36
    def direct(dA, dB, p):
        lit = '0x%x' % f2u(float(p))
        A('v_mul_f32 v38, %s, v16' % lit)
        A('v_mul_f32 v39, %s, v20' % lit)
        A('v_mul_f32 v40, %s, v17' % lit)
        A('v_mul_f32 v41, %s, v21' % lit)
        A('v_exp_f32 v38, v38')
        A('v_exp_f32 v39, v39')
        A('v_fract_f32 v40, v40')
        A('v_fract_f32 v41, v41')
        A('v_cos_f32 v%d, v40' % dA)
        A('v_sin_f32 v%d, v40' % (dA + 1))
        A('v_cos_f32 v%d, v41' % dB)
        A('v_sin_f32 v%d, v41' % (dB + 1))
        A('v_mul_f32 v%d, v%d, v38' % (dA, dA))
        A('v_mul_f32 v%d, v%d, v38' % (dA + 1, dA + 1))
        A('v_mul_f32 v%d, v%d, v39' % (dB, dB))
        A('v_mul_f32 v%d, v%d, v39' % (dB + 1, dB + 1))
    def cmul2(dA, xA, yA, dB, xB, yB):
        A('v_pk_mul_f32 %s, %s, %s op_sel_hi:[1,0]' % (vr(TA, 2), vr(xA, 2), vr(yA, 2)))
        A('v_pk_mul_f32 %s, %s, %s op_sel_hi:[1,0]' % (vr(TB, 2), vr(xB, 2), vr(yB, 2)))
        A('v_pk_fma_f32 %s, %s, %s, %s op_sel:[1,1,0] op_sel_hi:[0,1,1] neg_lo:[1,0,0]' % (vr(dA, 2), vr(xA, 2), vr(yA, 2), vr(TA, 2)))
        A('v_pk_fma_f32 %s, %s, %s, %s op_sel:[1,1,0] op_sel_hi:[0,1,1] neg_lo:[1,0,0]' % (vr(dB, 2), vr(xB, 2), vr(yB, 2), vr(TB, 2)))
    def put(row, isH, xA, xB):
        neg = '-' if isH else ''
        pr = P + 2 * (put.k & 1); put.k += 1
        A('v_cvt_pk_bf16_f32 v%d, v%d, %sv%d' % (pr, xA, neg, xA + 1))
        A('v_cvt_pk_bf16_f32 v%d, v%d, %sv%d' % (pr + 1, xB, neg, xB + 1))
        A('ds_write_b64 v%d, %s offset:%d' % (VW, vr(pr, 2), row * 528 + (KG_H if isH else 0)))
    put.k = 0
    P = 42
    def make_L(s):
        direct(MA, MB, s)
        A('v_mov_b32 v46, 0x3f80')
        A('v_mov_b32 v47, 0x3f80')
        A('ds_write_b64 v%d, v[46:47] offset:0' % VW)
        put(1, False, MA, MB)
        cmul2(XA, MA, MA, XB, MB, MB)
        put(2, False, XA, XB)
        for b in range(3, 16):
            cmul2(XA, XA, MA, XB, XB, MB)
            put(b, False, XA, XB)
    HA, HB, NA, NB = 48, 50, 52, 54
    def start_H(s, a0):
        direct(NA, NB, 16 * s)
        if a0 == 0:
            A('v_mov_b32 v%d, v18' % HA); A('v_mov_b32 v%d, v19' % (HA + 1))
            A('v_mov_b32 v%d, v22' % HB); A('v_mov_b32 v%d, v23' % (HB + 1))
        else:
            direct(HA, HB, 16 * s * a0)
            cmul2(HA, HA, 18, HB, HB, 22)
    def make_H(nrows, first_is_current):
        for r in range(nrows):
            if r > 0 or not first_is_current:
                cmul2(HA, HA, NA, HB, HB, NB)
            put(r, True, HA, HB)
    ACC = 56
    FR = 64
    def job(s, a0, ninth=False, add_dsk=False):
        A('s_waitcnt lgkmcnt(0)')
        for half in range(2):
            for st in range(4):
                step = half * 4 + st
                A('ds_read_b128 %s, v%d offset:%d' % (vr(FR + st * 8, 4), VRD, KG_H + 64 * step))
                A('ds_read_b128 %s, v%d offset:%d' % (vr(FR + st * 8 + 4, 4), VRD, 64 * step))
            for st in range(4):
                A('s_waitcnt lgkmcnt(%d)' % (6 - 2 * st))
                c = '0' if (half == 0 and st == 0) else vr(ACC, 4)
                A('v_mfma_f32_16x16x32_bf16 %s, %s, %s, %s' % (vr(ACC, 4), vr(FR + st * 8, 4), vr(FR + st * 8 + 4, 4), c))
        A('s_mov_b32 s35, 0x%x' % f2u(float(s)))
        A('v_mov_b32 v60, 0x%x' % f2u(float(16 * a0 * s)))
        A('v_fma_f32 v60, v%d, s35, v60' % VB0)
        for r in range(4):
            if r:
                A('v_add_f32 v%d, 0x%x, v60' % (60 + r, f2u(float(16 * s * r))))
        for r in range(4):
            A('v_lshrrev_b32 v%d, 15, v%d' % (60 + r, 60 + r))
            A('v_subrev_u32 v%d, 0x7efe, v%d' % (60 + r, 60 + r))
            if a0 == 0:
                A('v_max_i32 v%d, 0, v%d' % (60 + r, 60 + r))
            A('v_add_u32 v%d, s%d, v%d' % (60 + r, SKC, 60 + r))
        A.nop(2)
        if add_dsk:
            A('v_add_f32 v%d, v%d, v%d' % (ACC, ACC, VDSK))
        A('v_cvt_pk_bf16_f32 v46, v%d, v%d' % (ACC, ACC + 1))
        A('v_cvt_pk_bf16_f32 v47, v%d, v%d' % (ACC + 2, ACC + 3))
        A('s_mov_b32 exec_hi, 0')
        A('ds_write_b16 v60, v46')
        A('ds_write_b16_d16_hi v61, v46')
        A('ds_write_b16 v62, v47')
        A('ds_write_b16_d16_hi v63, v47')
        if ninth:
            A('s_mov_b32 exec_lo, 0')
            A('s_mov_b32 exec_hi, 1')
            A('v_mov_b32 v60, s%d' % SKC)
            A('ds_write_b16 v60, v46 offset:%d' % (2 * 1409))
        A('s_mov_b64 exec, -1')

    lp1 = A.newlabel('kg_part1'); ljoin = A.newlabel('kg_join')
    A('s_and_b32 s35, s33, 1')
    A('s_cmp_eq_u32 s35, 1')
    A('s_cbranch_scc1 %s' % lp1)
    make_L(1)
    start_H(1, 0)
    make_H(8, True)
    job(1, 0, add_dsk=True)
    make_H(8, False)
    job(1, 8)
    make_L(2)
    start_H(2, 8)
    make_H(8, True)
    job(2, 8)
    A('s_branch %s' % ljoin)
    A.label(lp1)
    make_L(4)
    start_H(4, 8)
    make_H(8, True)
    job(4, 8)
    make_L(8)
    start_H(8, 8)
    make_H(9, True)
    job(8, 8, ninth=True)
    A.label(ljoin)
    A('s_waitcnt lgkmcnt(0)')
    A('s_barrier')
    A('s_and_b32 s35, s33, 1')
    A('s_lshl_b32 s35, s35, 6')
    A('v_add_u32 v16, s35, v1')
    A('v_lshlrev_b32 v17, 4, v16')
    A('v_sub_u32 v17, 2047, v17')
    A('v_cvt_f32_i32 v17, v17')
    A('v_mov_b32 v18, s%d' % SKC)
    A('s_mov_b32 s35, 0x3f7f3f7f')
    F = 20
    for e in range(17):
        if e == 0:
            A('v_mov_b32 v%d, v17' % F)
        else:
            A('v_add_f32 v%d, 0x%x, v17' % (F + e, f2u(float(-e))))
    PK = 40
    for i in range(9):
        a = F + 2 * i; b = min(F + 2 * i + 1, F + 16)
        A('v_cvt_pk_bf16_f32 v%d, v%d, v%d' % (PK + i, a, b))
    for i in range(9):
        A('v_pk_sub_u16 v%d, v%d, s35 clamp' % (PK + i, PK + i))
    for i in range(9):
        A('v_pk_lshlrev_b16 v%d, 1, v%d op_sel_hi:[0,1]' % (PK + i, PK + i))
    AD = 50
    for e in range(17):
        A('v_add_u32_sdwa v%d, v%d, v18 dst_sel:DWORD dst_unused:UNUSED_PAD src0_sel:WORD_%d src1_sel:DWORD' % (AD + e, PK + e // 2, e & 1))
    A('v_cmp_le_f32 vcc, 0, v%d' % (F + 16))
    VAL = 70
    for e in range(17):
        A('ds_read_u16 v%d, v%d' % (VAL + e, AD + e))
    A('s_waitcnt lgkmcnt(0)')
    A('v_cndmask_b32 v%d, 0, v%d, vcc' % (VAL + 16, VAL + 16))
    for i in range(8):
        A('v_lshl_or_b32 v%d, v%d, 16, v%d' % (88 + i, VAL + 2 * i + 1, VAL + 2 * i))
    for i in range(8):
        A('v_lshl_or_b32 v%d, v%d, 16, v%d' % (96 + i, VAL + 2 * i + 2, VAL + 2 * i + 1))
    A('v_lshlrev_b32 v19, 5, v16')
    A('s_lshl_b32 s35, s29, 13')
    A('s_add_u32 s35, s35, %d' % WS_KR)
    A('s_add_u32 s36, s35, 4096')
    A('buffer_store_dwordx4 v[88:91], v19, s[20:23], s35 offen')
    A('buffer_store_dwordx4 v[92:95], v19, s[20:23], s35 offen offset:16')
    A('buffer_store_dwordx4 v[96:99], v19, s[20:23], s36 offen')
    A('buffer_store_dwordx4 v[100:103], v19, s[20:23], s36 offen offset:16')
    lend = A.newlabel('kg_end')
    A('s_cmp_lg_u32 s33, 3')
    A('s_cbranch_scc1 %s' % lend)
    A('v_lshrrev_b32 v2, 5, v1')
    A('v_lshlrev_b32 v2, 3, v2')
    A('v_bfe_u32 v3, v1, 2, 2')
    A('v_add_u32 v2, v2, v3')
    A('v_lshlrev_b32 v2, 6, v2')
    A('v_bfe_u32 v3, v1, 4, 1')
    A('v_lshlrev_b32 v3, 1, v3')
    A('v_bfe_u32 v4, v1, 1, 1')
    A('v_add_u32 v3, v3, v4')
    A('v_and_b32 v4, 1, v1')
    A('v_lshlrev_b32 v4, 2, v4')
    A('v_add_u32 v3, v3, v4')
    A('v_lshlrev_b32 v3, 3, v3')
    A('v_add_u32 v2, v2, v3')
    A('v_add_u32 v2, %d, v2' % KG_WO)
    A('ds_read_b64_tr_b16 v[4:5], v2')
    A('ds_read_b64_tr_b16 v[6:7], v2 offset:256')
    A('ds_read_b64_tr_b16 v[8:9], v2 offset:1024')
    A('ds_read_b64_tr_b16 v[10:11], v2 offset:1280')
    A('s_and_b32 s31, s24, 15')
    A('s_lshr_b32 s32, s24, 4')
    A('s_lshl_b32 s31, s31, 5')
    A('s_lshl_b32 s32, s32, 1')
    A('s_add_u32 s31, s31, s32')
    A('s_lshl_b32 s31, s31, 10')
    A('s_add_u32 s31, s31, %d' % WS_WOF)
    A('v_lshlrev_b32 v3, 4, v1')
    A('s_waitcnt lgkmcnt(0)')
    A('buffer_store_dwordx4 v[4:7], v3, s[20:23], s31 offen')
    A('buffer_store_dwordx4 v[8:11], v3, s[20:23], s31 offen offset:1024')
    A.label(lend)
    A('s_endpgm')

def k1(A):
    A('.p2align 8')
    A('.type k1_kernel,@function')
    A.label('k1_kernel')
    A('s_cmp_ge_u32 s2, 512')
    A('s_cbranch_scc1 k1_exit')
    A('s_cmp_ge_u32 s2, 256')
    A('s_cbranch_scc1 k1_kgen')
    k1_gemm(A)
    k1_kgen(A)
    A.label('k1_exit')
    A('s_endpgm')

L_K = 0
L_V = 65536
L_KR = 131072
L_U = L_KR + 4 * 4160
K2_LDS = L_U + 2 * 4608

def k2_attn(A):
    VK, VV, Q = 2, 3, 4
    KB = [8, 12]; V0 = [16, 20]; V1 = [24, 28]; P = 32; O = 40; S = [56, 72]; NM = 88
    A.label('k2_attn')
    A('s_lshl_b32 s28, s25, 6')
    A('s_lshl_b32 s29, s26, 3')
    A('s_add_u32 s29, s29, s24')
    A('s_add_u32 s32, s28, s29')
    A('s_lshl_b32 s32, s32, 10')
    A('v_lshlrev_b32 v104, 4, v1')
    A('buffer_load_dwordx4 v[4:7], v104, s[12:15], s32 offen')
    A('s_add_u32 s33, s28, s24')
    A('s_lshl_b32 s33, s33, 10')
    A('s_add_u32 s34, s33, %d' % WS_VF)
    A('s_add_u32 s33, s33, %d' % WS_KF)
    A('s_lshl_b32 s35, s24, 10')
    for r in range(8):
        A('s_add_u32 m0, s35, %d' % (L_K + r * 8192))
        A('s_nop 0')
        A('buffer_load_dwordx4 v104, s[12:15], s33 offen lds')
        A('s_add_u32 m0, s35, %d' % (L_V + r * 8192))
        A('s_add_u32 s33, s33, 8192')
        A('buffer_load_dwordx4 v104, s[12:15], s34 offen lds')
        A('s_add_u32 s34, s34, 8192')
    A('v_and_b32 v105, 31, v1')
    A('v_cmp_eq_u32 vcc, 16, v105')
    A('v_cmp_eq_u32 s[36:37], 20, v105')
    A('s_nop 1')
    A('s_or_b64 vcc, vcc, s[36:37]')
    A('v_mov_b32 v106, 0x3f803f80')
    A('s_nop 1')
    A('v_cndmask_b32 v106, 0, v106, vcc')
    for r in range(16, 32):
        A('v_mov_b32 v%d, v106' % r)
    for r in range(NM, NM + 16):
        A('v_mov_b32 v%d, 0' % r)
    A('s_mov_b32 s30, 0xffff')
    A('s_mov_b32 s31, 0xffff')
    A('s_mov_b32 s40, 1')
    A('s_mov_b32 s41, 6')
    A('s_mov_b32 s42, 0')
    A('s_waitcnt vmcnt(14)')
    A('s_barrier')
    A.label('k2_restart')
    A('v_mov_b32 v2, v104')
    A('v_lshrrev_b32 v105, 5, v1')
    A('v_lshlrev_b32 v105, 8, v105')
    A('v_and_b32 v3, 15, v1')
    A('v_lshlrev_b32 v3, 4, v3')
    A('v_add3_u32 v3, v3, v105, 0')
    A('v_add_u32 v3, %d, v3' % L_V)
    for r in range(O, O + 16):
        A('v_mov_b32 v%d, 0' % r)
    for r in range(P, P + 8):
        A('v_mov_b32 v%d, 0' % r)
    A('ds_read_b128 %s, v2' % vr(KB[0], 4))
    A('ds_read_b128 %s, v2 offset:1024' % vr(KB[1], 4))
    A('s_mov_b64 exec, s[30:31]')
    A('ds_read_b128 %s, v3' % vr(V0[0], 4))
    A('ds_read_b128 %s, v3 offset:512' % vr(V1[0], 4))
    for r in range(4):
        A('v_mov_b32 v%d, 0' % (V1[1] + r))
    A('s_mov_b64 exec, -1')
    A('s_waitcnt lgkmcnt(3)')
    A('v_mfma_f32_32x32x16_bf16 %s, %s, %s, %s' % (vr(S[0], 16), vr(KB[0], 4), vr(Q, 4), vr(NM, 16)))
    A('s_mov_b32 s38, 0')
    A.nop(10)
    A.label('k2_loop')
    lb2 = A.newlabel('k2_nb')
    A('s_cmp_lg_u32 s38, s40')
    A('s_cbranch_scc1 %s' % lb2)
    A('s_waitcnt vmcnt(8)')
    A('s_barrier')
    A.label(lb2)
    lb3 = A.newlabel('k2_nb')
    A('s_cmp_lg_u32 s38, s41')
    A('s_cbranch_scc1 %s' % lb3)
    A('s_waitcnt vmcnt(0)')
    A('s_barrier')
    A.label(lb3)
    for u in range(4):
        cur = S[u & 1]; nxt = S[(u + 1) & 1]
        def e(i): A('v_exp_f32 v%d, v%d' % (cur + i, cur + i))
        def c(i): A('v_cvt_pk_bf16_f32 v%d, v%d, v%d' % (P + i, cur + 2 * i, cur + 2 * i + 1))
        A('s_waitcnt lgkmcnt(0)')
        e(0); e(1)
        A('v_mfma_f32_32x32x16_bf16 %s, %s, %s, %s' % (vr(O, 16), vr(V1[(u + 1) & 1], 4), vr(P + 4, 4), vr(O, 16)))
        A('ds_read_b128 %s, v2 offset:%d' % (vr(KB[u & 1], 4), (u + 2) * 1024))
        A('s_mov_b64 exec, s[30:31]')
        A('ds_read_b128 %s, v3 offset:%d' % (vr(V0[(u + 1) & 1], 4), (u + 1) * 1024))
        A('ds_read_b128 %s, v3 offset:%d' % (vr(V1[(u + 1) & 1], 4), (u + 1) * 1024 + 512))
        A('s_mov_b64 exec, -1')
        for i in range(2, 7): e(i)
        A('v_mfma_f32_32x32x16_bf16 %s, %s, %s, %s' % (vr(nxt, 16), vr(KB[(u + 1) & 1], 4), vr(Q, 4), vr(NM, 16)))
        e(7); e(8)
        for i in range(4): c(i)
        for i in range(9, 12): e(i)
        A('v_mfma_f32_32x32x16_bf16 %s, %s, %s, %s' % (vr(O, 16), vr(V0[u & 1], 4), vr(P, 4), vr(O, 16)))
        for i in range(12, 16): e(i)
        for i in range(4, 8): c(i)
    A('v_add_u32 v2, 4096, v2')
    A('v_add_u32 v3, 4096, v3')
    A('s_add_u32 s38, s38, 1')
    A('s_cmp_lt_u32 s38, 16')
    A('s_cbranch_scc1 k2_loop')
    A('s_waitcnt lgkmcnt(0)')
    A('v_mfma_f32_32x32x16_bf16 %s, %s, %s, %s' % (vr(O, 16), vr(V1[1], 4), vr(P + 4, 4), vr(O, 16)))
    A.nop(12)
    lfin = A.newlabel('k2_fin')
    A('s_cmp_eq_u32 s42, 1')
    A('s_cbranch_scc1 %s' % lfin)
    A('v_mov_b32 v105, 0x1f800000')
    A('v_mov_b32 v106, 0x5f800000')
    A('v_cmp_le_f32 vcc, v105, v%d' % (O + 8))
    A('v_cmp_le_f32 s[36:37], v%d, v106' % (O + 8))
    A('s_nop 1')
    A('s_and_b64 vcc, vcc, s[36:37]')
    A('v_mov_b32 v105, 0x7f800000')
    for r in range(8):
        A('v_cmp_lt_f32 s[36:37], abs(v%d), v105' % (O + r))
        A('s_nop 1')
        A('s_and_b64 vcc, vcc, s[36:37]')
    A('s_not_b64 s[36:37], vcc')
    A('s_cmp_eq_u64 s[36:37], 0')
    A('s_cbranch_scc1 %s' % lfin)
    A('s_mov_b32 s42, 1')
    A('s_mov_b32 s40, 99')
    A('s_mov_b32 s41, 99')
    A('v_mov_b32 v105, 0xff800000')
    A('v_mov_b32 v2, v104')
    A('s_mov_b32 s38, 0')
    A.label('k2_maxloop')
    A('ds_read_b128 %s, v2' % vr(KB[0], 4))
    A('s_waitcnt lgkmcnt(0)')
    A('v_mfma_f32_32x32x16_bf16 %s, %s, %s, 0' % (vr(S[0], 16), vr(KB[0], 4), vr(Q, 4)))
    A.nop(14)
    for i in range(8):
        A('v_max3_f32 v105, v105, v%d, v%d' % (S[0] + 2 * i, S[0] + 2 * i + 1))
    A('v_add_u32 v2, 1024, v2')
    A('s_add_u32 s38, s38, 1')
    A('s_cmp_lt_u32 s38, 64')
    A('s_cbranch_scc1 k2_maxloop')
    A('v_mov_b32 v106, v105')
    A.nop(2)
    A('v_permlane32_swap_b32 v105, v106')
    A.nop(2)
    A('v_max_f32 v105, v105, v106')
    for r in range(NM, NM + 16):
        A('v_sub_f32 v%d, 0, v105' % r)
    A('s_branch k2_restart')
    A.label(lfin)
    A('v_rcp_f32 v105, v%d' % (O + 8))
    A('s_nop 0')
    for r in range(8):
        A('v_mul_f32 v%d, v%d, v105' % (O + r, O + r))
    for i in range(4):
        A('v_cvt_pk_bf16_f32 v%d, v%d, v%d' % (108 + i, O + 2 * i, O + 2 * i + 1))
    A('s_lshl_b32 s32, s29, 5')
    A('s_add_u32 s32, s32, s25')
    A('s_lshl_b32 s32, s32, 10')
    A('s_add_u32 s32, s32, %d' % WS_OF)
    A('buffer_store_dwordx4 v[108:111], v104, s[12:15], s32 offen')
    A('s_endpgm')

def k2_conv(A):
    A.label('k2_conv')
    A('s_setprio 2')
    A('s_sub_u32 s28, s24, 8')
    A('v_lshlrev_b32 v2, 4, v1')
    A('s_lshl_b32 s29, s27, 14')
    A('s_lshl_b32 s30, s28, 12')
    A('s_add_u32 s29, s29, s30')
    A('s_add_u32 s29, s29, %d' % WS_KR)
    A('s_mul_i32 s31, s28, 4160')
    A('s_add_u32 s31, s31, %d' % L_KR)
    for j in range(4):
        A('s_add_u32 m0, s31, %d' % (j * 1024))
        A('s_nop 0')
        A('buffer_load_dwordx4 v2, s[12:15], s29 offen lds')
        A('s_add_u32 s29, s29, 1024')
    A('v_lshlrev_b32 v3, 11, v1')
    A('s_lshl_b32 s32, s28, 19')
    A('s_lshl_b32 s33, s27, 2')
    A('s_add_u32 s32, s32, s33')
    for q in range(4):
        A('buffer_load_dword v%d, v3, s[16:19], s32 offen' % (8 + 2 * q))
        A('buffer_load_dword v%d, v3, s[16:19], s32 offen offset:1024' % (9 + 2 * q))
        A('s_add_u32 s32, s32, %d' % (128 * 1024))
    A('v_mov_b32 v4, 0')
    A('v_mov_b32 v5, 0')
    A('v_lshlrev_b32 v6, 2, v1')
    A('v_add_u32 v6, s31, v6')
    A('s_mov_b32 exec_lo, 0xffff')
    A('s_mov_b32 exec_hi, 0')
    A('ds_write_b32 v6, v4 offset:4096')
    A('s_mov_b64 exec, -1')
    lz = A.newlabel('cv_nz')
    A('s_cmp_ge_u32 s28, 2')
    A('s_cbranch_scc1 %s' % lz)
    A('s_mul_i32 s33, s28, 4608')
    A('v_lshlrev_b32 v6, 3, v1')
    A('v_add_u32 v6, s33, v6')
    A('ds_write_b64 v6, v[4:5] offset:%d' % 0 if False else 'v_add_u32 v6, %d, v6' % L_U)
    A('ds_write_b64 v6, v[4:5]')
    A.label(lz)
    A('s_barrier')
    A('s_barrier')
    A('s_waitcnt vmcnt(0)')
    A('s_mov_b32 s34, 0x05040100')
    A('s_mov_b32 s35, 0x07060302')
    A('v_lshlrev_b32 v6, 2, v1')
    A('s_lshl_b32 s33, s28, 10')
    A('s_add_u32 s33, s33, %d' % (L_U + 512))
    A('v_add_u32 v6, s33, v6')
    for q in range(4):
        A('v_perm_b32 v%d, v%d, v%d, s34' % (16 + 2 * q, 9 + 2 * q, 8 + 2 * q))
        A('v_perm_b32 v%d, v%d, v%d, s35' % (17 + 2 * q, 9 + 2 * q, 8 + 2 * q))
    for q in range(4):
        A('ds_write_b32 v6, v%d offset:%d' % (16 + 2 * q, 256 * q))
        A('ds_write_b32 v6, v%d offset:%d' % (17 + 2 * q, 256 * q + 4608))
    A('v_and_b32 v7, 15, v1')
    A('v_lshrrev_b32 v8, 4, v1')
    A('v_and_b32 v9, 1, v1')
    A('v_lshlrev_b32 v10, 3, v8')
    A('v_add_u32 v10, v10, v7')
    A('v_sub_u32 v10, v9, v10')
    A('v_add_u32 v10, 2054, v10')
    A('v_lshlrev_b32 v10, 1, v10')
    A('v_xor_b32 v9, 1, v9')
    A('v_mul_u32_u24 v9, 4160, v9')
    A('v_add_u32 v10, v10, v9')
    A('v_add_u32 v10, %d, v10' % (L_KR - 448))
    A('v_add_u32 v11, 8320, v10')
    A('v_lshlrev_b32 v12, 5, v7')
    A('v_lshlrev_b32 v13, 4, v8')
    A('v_sub_u32 v12, v12, v13')
    A('v_add_u32 v12, %d, v12' % (L_U + 528 - 448))
    A('s_lshl_b32 s33, s28, 9')
    A('v_add_u32 v13, s33, v12')
    A('s_sub_u32 s36, 7, s28')
    A('s_lshl_b32 s33, s36, 9')
    A('v_add_u32 v12, s33, v12')
    VKA, VKB_, VUA, VUB = 10, 11, 13, 12
    ACC = 16
    for r in range(ACC, ACC + 16):
        A('v_mov_b32 v%d, 0' % r)
    A('s_waitcnt lgkmcnt(0)')
    A('s_barrier')
    KF = [32, 40]
    UF = [48, 64]
    def kreads(k, buf):
        o = (7 - k) * 16
        for ci, va in ((0, VKA), (1, VKB_)):
            A('ds_read2_b32 %s, v%d offset0:%d offset1:%d' % (vr(KF[buf] + 4 * ci, 2), va, o, o + 1))
            A('ds_read2_b32 %s, v%d offset0:%d offset1:%d' % (vr(KF[buf] + 4 * ci + 2, 2), va, o + 2, o + 3))
    def ureads(k, buf, both):
        o = (7 - k) * 64
        if both:
            A('ds_read_b128 %s, v%d offset:%d' % (vr(UF[buf], 4), VUA, o))
            A('ds_read_b128 %s, v%d offset:%d' % (vr(UF[buf] + 4, 4), VUA, o + 4608))
        A('ds_read_b128 %s, v%d offset:%d' % (vr(UF[buf] + 8, 4), VUB, o))
        A('ds_read_b128 %s, v%d offset:%d' % (vr(UF[buf] + 12, 4), VUB, o + 4608))
    def mf(buf, both):
        lst = [(0, 0), (1, 1), (2, 0), (3, 1)] if both else [(2, 0), (3, 1)]
        for (ai, ci) in lst:
            acc = vr(ACC + 4 * ai, 4)
            A('v_mfma_f32_16x16x32_bf16 %s, %s, %s, %s' % (acc, vr(UF[buf] + 4 * ai, 4), vr(KF[buf] + 4 * ci, 4), acc))
    def block(both):
        nu = 4 if both else 2
        kreads(0, 0); ureads(0, 0, both)
        for k in range(8):
            buf = k & 1
            if k < 7:
                kreads(k + 1, buf ^ 1)
                A('s_waitcnt lgkmcnt(4)')
                ureads(k + 1, buf ^ 1, both)
            else:
                A('s_waitcnt lgkmcnt(0)')
            mf(buf, both)
        for v in (VKA, VKB_, VUB) + ((VUA,) if both else ()):
            A('v_subrev_u32 v%d, 512, v%d' % (v, v))
    A('s_mov_b32 s38, 0')
    A.label('cv_loop1')
    block(True)
    A('s_add_u32 s38, s38, 1')
    A('s_cmp_le_u32 s38, s28')
    A('s_cbranch_scc1 cv_loop1')
    A.label('cv_loop2')
    block(False)
    A('s_add_u32 s38, s38, 1')
    A('s_cmp_le_u32 s38, s36')
    A('s_cbranch_scc1 cv_loop2')
    A.nop(8)
    A('v_lshlrev_b32 v8, 6, v8')
    A('v_add_u32 v8, v8, v7')
    A('v_lshlrev_b32 v8, 11, v8')
    A('s_lshl_b32 s33, s27, 2')
    A('s_add_u32 s33, s33, 1024')
    for (T, a) in ((28, 0), (36, 2)):
        A('s_lshl_b32 s34, s%d, 19' % T)
        A('s_add_u32 s34, s34, s33')
        for r in range(4):
            d = 80 + 4 * (a // 2) + r
            A('v_cvt_pk_bf16_f32 v%d, v%d, v%d' % (d, ACC + 4 * a + r, ACC + 4 * (a + 1) + r))
            A('buffer_store_dword v%d, v8, s[20:23], s34 offen' % d)
            A('s_add_u32 s34, s34, 32768')
    A('s_endpgm')

def k2(A):
    A('.p2align 8')
    A('.type k2_kernel,@function')
    A.label('k2_kernel')
    A('s_cmp_ge_u32 s2, 256')
    A('s_cbranch_scc1 k2_exit')
    A('s_load_dwordx2 s[4:5], s[0:1], %d' % KA_WS)
    A('s_load_dwordx2 s[6:7], s[0:1], %d' % KA_U)
    A('s_load_dwordx2 s[8:9], s[0:1], %d' % KA_OUT)
    A('v_lshrrev_b32 v2, 6, v0')
    A('v_and_b32 v1, 63, v0')
    A('s_and_b32 s28, s2, 7')
    A('v_readfirstlane_b32 s24, v2')
    A('s_lshr_b32 s29, s2, 3')
    A('s_lshl_b32 s25, s28, 2')
    A('s_and_b32 s30, s29, 3')
    A('s_add_u32 s25, s25, s30')
    A('s_lshr_b32 s26, s29, 2')
    A('s_lshl_b32 s27, s28, 5')
    A('s_add_u32 s27, s27, s29')
    A('s_waitcnt lgkmcnt(0)')
    srd(A, 12, 4, WS_SIZE)
    srd(A, 16, 6, 2048 * 1024)
    srd(A, 20, 8, 2048 * 2048)
    A('s_cmp_ge_u32 s24, 8')
    A('s_cbranch_scc1 k2_conv')
    k2_attn(A)
    k2_conv(A)
    A.label('k2_exit')
    A('s_endpgm')

def k3(A):
    A('.p2align 8')
    A('.type k3_kernel,@function')
    A.label('k3_kernel')
    A('s_cmp_ge_u32 s2, 256')
    A('s_cbranch_scc1 k3_exit')
    A('s_load_dwordx2 s[4:5], s[0:1], %d' % KA_WS)
    A('s_load_dwordx2 s[8:9], s[0:1], %d' % KA_OUT)
    A('v_lshrrev_b32 v2, 6, v0')
    A('v_and_b32 v1, 63, v0')
    A('s_and_b32 s28, s2, 7')
    A('v_readfirstlane_b32 s24, v2')
    A('s_lshr_b32 s29, s2, 3')
    A('s_lshl_b32 s25, s28, 2')
    A('s_and_b32 s30, s29, 3')
    A('s_add_u32 s25, s25, s30')
    A('s_lshr_b32 s26, s29, 2')
    A('v_lshlrev_b32 v2, 4, v1')
    A('s_waitcnt lgkmcnt(0)')
    srd(A, 12, 4, WS_SIZE)
    srd(A, 20, 8, 2048 * 2048)
    A('s_lshl_b32 s32, s25, 6')
    A('s_lshl_b32 s33, s24, 3')
    A('s_add_u32 s32, s32, s33')
    A('s_lshl_b32 s32, s32, 10')
    A('s_add_u32 s32, s32, %d' % WS_OF)
    A('s_add_u32 s34, s32, 32768')
    A('s_lshl_b32 s35, s26, 6')
    A('s_add_u32 s35, s35, s33')
    A('s_lshl_b32 s35, s35, 10')
    A('s_add_u32 s35, s35, %d' % WS_WOF)
    A('s_add_u32 s36, s35, 32768')
    FR = 4
    ACC = 192
    for j in range(8):
        b = 64 + 16 * j
        o = j * 1024
        so = [32, 34, 35, 36]
        for t in range(4):
            if o < 4096:
                A('buffer_load_dwordx4 %s, v2, s[12:15], s%d offen offset:%d' % (vr(b + 4 * t, 4), so[t], o))
            else:
                A('buffer_load_dwordx4 %s, v3, s[12:15], s%d offen offset:%d' % (vr(b + 4 * t, 4), so[t], o - 4096))
        if j == 0:
            A('v_add_u32 v3, 4096, v2')
    for j in range(8):
        b = 64 + 16 * j
        A('s_waitcnt vmcnt(%d)' % (4 * (7 - j)))
        for tt in range(2):
            for nt in range(2):
                acc = vr(ACC + 16 * (2 * tt + nt), 16)
                c = '0' if j == 0 else acc
                A('v_mfma_f32_32x32x16_bf16 %s, %s, %s, %s' % (acc, vr(b + 8 + 4 * nt, 4), vr(b + 4 * tt, 4), c))
    A('s_lshl_b32 s37, s24, 14')
    A('v_add_u32 v4, s37, v2')
    A.nop(12)
    for t in range(4):
        for q in range(4):
            A('ds_write_b128 v4, %s offset:%d' % (vr(ACC + 16 * t + 4 * q, 4), t * 4096 + q * 1024))
    A('s_waitcnt lgkmcnt(0)')
    A('s_barrier')
    A('s_lshl_b32 s37, s24, 12')
    A('v_add_u32 v4, s37, v2')
    for ww in range(4):
        for q in range(4):
            A('ds_read_b128 %s, v4 offset:%d' % (vr(64 + 16 * ww + 4 * q, 4), ww * 16384 + q * 1024))
    A('s_waitcnt lgkmcnt(0)')
    for r in range(16):
        A('v_add_f32 v%d, v%d, v%d' % (64 + r, 64 + r, 80 + r))
        A('v_add_f32 v%d, v%d, v%d' % (96 + r, 96 + r, 112 + r))
    for r in range(16):
        A('v_add_f32 v%d, v%d, v%d' % (64 + r, 64 + r, 96 + r))
    for i in range(8):
        A('v_cvt_pk_bf16_f32 v%d, v%d, v%d' % (128 + i, 64 + 2 * i, 64 + 2 * i + 1))
    A('s_lshr_b32 s37, s24, 1')
    A('s_lshl_b32 s37, s37, 5')
    A('s_lshl_b32 s38, s25, 6')
    A('s_add_u32 s37, s37, s38')
    A('s_lshl_b32 s37, s37, 11')
    A('s_and_b32 s38, s24, 1')
    A('s_lshl_b32 s38, s38, 6')
    A('s_lshl_b32 s39, s26, 7')
    A('s_add_u32 s38, s38, s39')
    A('s_add_u32 s37, s37, s38')
    A('v_and_b32 v5, 31, v1')
    A('v_lshlrev_b32 v5, 11, v5')
    A('v_lshrrev_b32 v6, 5, v1')
    A('v_lshlrev_b32 v6, 5, v6')
    A('v_add_u32 v5, v5, v6')
    A('buffer_store_dwordx4 v[128:131], v5, s[20:23], s37 offen')
    A('buffer_store_dwordx4 v[132:135], v5, s[20:23], s37 offen offset:16')
    A.label('k3_exit')
    A('s_endpgm')

VGPRS = {'k1': 128, 'k2': 112, 'k3': 256}
```

```python
import sys
from gen import *
import gen
def build(path, kernels):
    A = Asm()
    hdr = open('cdna_kernels/%s.s.ref' % NAME).read().split('\n')
    head = []
    for l in hdr:
        if l.startswith('; @launch') or l.startswith('; Override') or l.startswith('; grid='):
            continue
        if not l.startswith(';'):
            break
        head.append(l)
    launches = {'k1': 'grid=(512,1,1) block=(256,1,1) lds=81920',
                'k2': 'grid=(256,1,1) block=(768,1,1) lds=%d' % getattr(gen, 'K2_LDS', 163840),
                'k3': 'grid=(256,1,1) block=(256,1,1) lds=65536'}
    for k in kernels:
        head.append('; @launch kernel=%s_kernel %s' % (k, launches[k]))
    out = '\n'.join(head) + '\n.amdgcn_target "amdgcn-amd-amdhsa--gfx950"\n.text\n'
    for k in kernels:
        out += '.globl %s_kernel\n' % k
        getattr(gen, k)(A)
    out += A.text()
    out += '.section .rodata,"a"\n'
    for k in kernels:
        out += '.p2align 6\n' + kernel_desc(k + '_kernel', gen.VGPRS[k])
    open(path, 'w').write(out)
if __name__ == '__main__':
    build(sys.argv[1], sys.argv[2].split(','))
```

```python
import sys, math, struct
from asmlib import *

NAME = 'concat_heads__mha_block__ssm_conv_s4d__prompt'
WS_QF = 0
WS_KF = 2 << 20
WS_VF = 4 << 20
WS_OF = 6 << 20
WS_WOF = 8 << 20
WS_KR = 9 << 20
WS_SIZE = 256 << 20
KA_X, KA_WQKV, KA_WO, KA_U, KA_LAR, KA_AI, KA_CR, KA_CI, KA_LDT, KA_DSK, KA_OUT, KA_DBG, KA_WS = [8 * i for i in range(13)]

STAMP = False
ST1 = ''
ST2 = ''
ST2C = ''
ST3 = ''
WS_STAMP = 64 << 20
def stamp(A, i, real=False):
    if not STAMP: return
    A('s_memtime s[%d:%d]' % (64 + 2 * i, 65 + 2 * i)) if not real else A('s_memrealtime s[%d:%d]' % (64 + 2 * i, 65 + 2 * i))
    A('s_waitcnt lgkmcnt(0)')
def stamp_flush(A, n, kidx, wave_sgpr, srd_base):
    if not STAMP: return
    A('s_waitcnt vmcnt(0) lgkmcnt(0)')
    A('s_lshl_b32 s62, s2, 4')
    A('s_add_u32 s62, s62, s%d' % wave_sgpr)
    A('s_lshl_b32 s62, s62, 6')
    A('s_add_u32 s62, s62, %d' % (WS_STAMP + kidx * (1 << 20)))
    A('s_mov_b64 exec, 1')
    A('v_mov_b32 v0, 0')
    for i in range(n):
        A('v_mov_b32 v1, s%d' % (64 + 2 * i))
        A('buffer_store_dword v1, v0, s[%d:%d], s62 offen offset:%d' % (srd_base, srd_base + 3, 4 * i))
    A('s_waitcnt vmcnt(0)')

def f2u(f):
    return struct.unpack('<I', struct.pack('<f', f))[0]
LOG2E = 1.4426950408889634
QSCALE = 0.25 * LOG2E


G_WSLOT = 12288
G_NW = 4
G_XSLOT = 8192
G_NX = 3
G_XBASE = G_NW * G_WSLOT
NCH = 16

def k1_gemm(A):
    A.label('k1_gemm')
    stamp(A, 0, True); stamp(A, 1)
    A('s_load_dwordx4 s[4:7], s[0:1], %d' % KA_X)
    A('s_load_dwordx2 s[8:9], s[0:1], %d' % KA_WS)
    A('v_lshrrev_b32 v2, 6, v0')
    A('v_and_b32 v1, 63, v0')
    A('s_and_b32 s24, s2, 7')
    A('v_readfirstlane_b32 s33, v2')
    A('s_lshr_b32 s25, s2, 3')
    A('s_and_b32 s26, s24, 3')
    A('s_lshl_b32 s26, s26, 3')
    A('s_and_b32 s27, s25, 7')
    A('s_add_u32 s26, s26, s27')
    A('s_lshr_b32 s27, s24, 2')
    A('s_lshl_b32 s27, s27, 2')
    A('s_lshr_b32 s28, s25, 3')
    A('s_add_u32 s27, s27, s28')
    A('s_cmp_lt_u32 s33, 4')
    A('s_cbranch_scc1 k1_gemm_comp')
    A('s_sub_u32 s33, s33, 4')
    A('s_lshl_b32 s28, s27, 1')
    A('s_add_u32 s28, s28, s26')
    A('s_and_b32 s28, s28, 7')
    A('s_lshl_b32 s29, s33, 10')
    A('s_lshl_b32 s30, s33, 11')
    A('s_add_u32 s30, s30, %d' % G_XBASE)
    A('s_lshl_b32 s31, s26, 6')
    A('s_lshl_b32 s32, s33, 4')
    A('s_add_u32 s31, s31, s32')
    A('v_lshrrev_b32 v9, 3, v1')
    A('v_add_u32 v2, s31, v9')
    A('v_lshlrev_b32 v2, 10, v2')
    A('v_lshrrev_b32 v10, 1, v9')
    A('v_xor_b32 v10, v10, v1')
    A('v_and_b32 v10, 7, v10')
    A('v_lshlrev_b32 v10, 4, v10')
    A('v_add_u32 v3, v2, v10')
    A('v_xor_b32 v10, 64, v10')
    A('v_add_u32 v2, v2, v10')
    A('v_add_u32 v2, 8192, v2')
    A('s_lshl_b32 s32, s33, 3')
    A('v_add_u32 v10, s32, v9')
    A('s_movk_i32 s36, 3072')
    A('v_mul_lo_u32 v4, v10, s36')
    A('v_bfe_u32 v11, v9, 1, 1')
    A('v_lshlrev_b32 v11, 2, v11')
    A('v_xor_b32 v11, v11, v1')
    A('v_and_b32 v11, 7, v11')
    A('v_lshlrev_b32 v11, 4, v11')
    A('s_lshl_b32 s32, s27, 7')
    A('v_add3_u32 v4, v4, v11, s32')
    A('v_add_u32 v5, 1024, v4')
    A('v_add_u32 v12, 2048, v4')
    A('s_waitcnt lgkmcnt(0)')
    srd(A, 12, 4, 2048 * 1024)
    srd(A, 16, 6, 512 * 3072)
    def dma_w(c):
        slot = (c % G_NW) * G_WSLOT
        A('s_add_u32 s36, s28, %d' % (c >> 1))
        A('s_and_b32 s36, s36, 7')
        A('s_mul_i32 s38, s36, %d' % (64 * 3072))
        if c & 1:
            A('s_add_u32 s38, s38, %d' % (32 * 3072))
        for T, vv in ((0, 4), (1, 5), (2, 12)):
            A('s_add_u32 m0, s29, %d' % (slot + T * 4096))
            A('s_nop 0')
            A('buffer_load_dwordx4 v%d, s[16:19], s38 offen lds' % vv)
    def dma_x(p):
        slot = (p % G_NX) * G_XSLOT
        A('s_add_u32 s36, s28, %d' % p)
        A('s_and_b32 s36, s36, 7')
        A('s_lshl_b32 s37, s36, 7')
        A('s_add_u32 m0, s30, %d' % slot)
        A('s_nop 0')
        A('buffer_load_dwordx4 v3, s[12:15], s37 offen lds')
        A('s_add_u32 m0, s30, %d' % (slot + 1024))
        A('s_nop 0')
        A('buffer_load_dwordx4 v2, s[12:15], s37 offen lds')
    issued = []
    def issue(kind, idx):
        if kind == 'x': dma_x(idx); issued.append(('x', idx, 2))
        else: dma_w(idx); issued.append(('w', idx, 3))
    def wait_for(c):
        need = max(i for i, (k, idx, n) in enumerate(issued) if (k == 'w' and idx == c) or (k == 'x' and idx == (c >> 1)))
        return sum(n for (k, idx, n) in issued[need + 1:])
    issue('x', 0); issue('w', 0); issue('w', 1); issue('x', 1); issue('w', 2); issue('w', 3); issue('x', 2)
    stamp(A, 2)
    for c in range(NCH):
        A('s_waitcnt vmcnt(%d)' % wait_for(c))
        A('s_barrier')
        if c == 0: stamp(A, 3)
        if c >= 1 and c + 3 < NCH:
            issue('w', c + 3)
        if c >= 2 and (c & 1) == 0 and (c // 2 - 1) + 3 < 8:
            issue('x', (c // 2 - 1) + 3)
    A('s_add_u32 s33, s33, 4')
    stamp(A, 4); stamp(A, 5); stamp(A, 6); stamp(A, 7); stamp(A, 8, True)
    if STAMP:
        srd(A, 20, 8, WS_SIZE)
    if STAMP: A('s_add_u32 s33, s33, 8')
    stamp_flush(A, 9, 0, 33, 20)
    A('s_endpgm')
    A.label('k1_gemm_comp')
    A('s_and_b32 s34, s33, 1')
    A('s_lshr_b32 s35, s33, 1')
    A('v_and_b32 v9, 31, v1')
    A('v_lshrrev_b32 v10, 5, v1')
    A('v_bfe_u32 v11, v1, 1, 3')
    A('v_xor_b32 v11, v11, v10')
    A('v_lshlrev_b32 v11, 4, v11')
    A('v_lshlrev_b32 v9, 7, v9')
    A('s_lshl_b32 s36, s34, 12')
    A('s_add_u32 s36, s36, %d' % G_XBASE)
    A('v_add3_u32 v6, v9, v11, s36')
    A('v_xor_b32 v7, 32, v6')
    A('v_xor_b32 v13, 64, v6')
    A('v_xor_b32 v14, 96, v6')
    A('v_lshrrev_b32 v9, 5, v1')
    A('v_lshlrev_b32 v9, 3, v9')
    A('v_bfe_u32 v10, v1, 2, 2')
    A('v_add_u32 v9, v9, v10')
    A('v_lshlrev_b32 v9, 7, v9')
    A('v_bfe_u32 v10, v1, 3, 1')
    A('v_xor_b32 v10, s35, v10')
    A('v_lshlrev_b32 v10, 6, v10')
    A('v_add_u32 v9, v9, v10')
    A('v_bfe_u32 v10, v1, 4, 1')
    A('v_lshlrev_b32 v10, 5, v10')
    A('v_and_b32 v11, 1, v1')
    A('v_lshlrev_b32 v11, 4, v11')
    A('v_add3_u32 v9, v9, v10, v11')
    A('v_bfe_u32 v10, v1, 1, 1')
    A('v_lshlrev_b32 v10, 3, v10')
    A('v_add_u32 v8, v9, v10')
    for r in range(16, 64):
        A('v_mov_b32 v%d, 0' % r)
    A('s_waitcnt lgkmcnt(0)')
    srd(A, 20, 8, WS_SIZE)
    XR = [6, 7, 13, 14]
    def reads(c):
        ws_ = (c % G_NW) * G_WSLOT
        xs = ((c >> 1) % G_NX) * G_XSLOT
        b = 64 + 32 * (c & 1)
        L = []
        for ks in range(2):
            L.append('ds_read_b128 %s, v%d offset:%d' % (vr(b + 4 * ks, 4), XR[2 * (c & 1) + ks], xs))
            for T in range(3):
                o = ws_ + T * 4096 + ks * 2048
                L.append('ds_read_b64_tr_b16 %s, v8 offset:%d' % (vr(b + 8 + T * 8 + 4 * ks, 2), o))
                L.append('ds_read_b64_tr_b16 %s, v8 offset:%d' % (vr(b + 8 + T * 8 + 4 * ks + 2, 2), o + 512))
        return L
    def mfmas(c):
        b = 64 + 32 * (c & 1)
        L = []
        for ks in range(2):
            x = vr(b + 4 * ks, 4)
            for T in range(3):
                wf = vr(b + 8 + T * 8 + 4 * ks, 4)
                acc = vr(16 + 16 * T, 16)
                if T < 2:
                    L.append('v_mfma_f32_32x32x16_bf16 %s, %s, %s, %s' % (acc, wf, x, acc))
                else:
                    L.append('v_mfma_f32_32x32x16_bf16 %s, %s, %s, %s' % (acc, x, wf, acc))
        return L
    stamp(A, 2)
    for c in range(NCH + 1):
        A('s_waitcnt lgkmcnt(0)')
        R = []
        if c < NCH:
            A('s_barrier')
            if c == 0: stamp(A, 3)
            R = reads(c)
        M = mfmas(c - 1) if c > 0 else []
        ri = 0
        if not M:
            for l in R: A(l)
        quota = [5, 5, 4, 0, 0, 0]
        for mi, m in enumerate(M):
            A(m)
            n = quota[mi]
            for l in R[ri:ri + n]: A(l)
            ri += n
        if c == 8: stamp(A, 4)
    stamp(A, 5)
    A.nop(12)
    A('s_mov_b32 s36, 0x%x' % f2u(QSCALE))
    for r in range(16):
        A('v_mul_f32 v%d, s36, v%d' % (16 + r, 16 + r))
    for T in range(3):
        for i in range(8):
            A('v_cvt_pk_bf16_f32 v%d, v%d, v%d' % (64 + T * 8 + i, 16 + 16 * T + 2 * i, 16 + 16 * T + 2 * i + 1))
    A('s_lshl_b32 s36, s27, 2')
    A('s_lshl_b32 s37, s35, 1')
    A('s_add_u32 s36, s36, s37')
    A('s_lshl_b32 s36, s36, 6')
    A('s_lshl_b32 s37, s26, 1')
    A('s_add_u32 s36, s36, s37')
    A('s_add_u32 s36, s36, s34')
    A('s_lshl_b32 s36, s36, 10')
    A('s_add_u32 s37, s36, %d' % (64 * 1024))
    A('v_lshlrev_b32 v9, 4, v1')
    A('s_add_u32 s38, s36, %d' % WS_KF)
    A('s_add_u32 s39, s37, %d' % WS_KF)
    A('buffer_store_dwordx4 v[72:75], v9, s[20:23], s38 offen' + ST1)
    A('buffer_store_dwordx4 v[76:79], v9, s[20:23], s39 offen' + ST1)
    A('v_bfe_u32 v10, v1, 4, 1')
    A('v_lshlrev_b32 v10, 16, v10')
    A('v_lshrrev_b32 v11, 5, v1')
    A('v_lshlrev_b32 v11, 8, v11')
    A('v_and_b32 v12, 15, v1')
    A('v_lshlrev_b32 v12, 4, v12')
    A('v_add3_u32 v10, v10, v11, v12')
    A('s_add_u32 s38, s36, %d' % WS_VF)
    A('buffer_store_dwordx4 v[80:83], v10, s[20:23], s38 offen' + ST1)
    A('buffer_store_dwordx4 v[84:87], v10, s[20:23], s38 offen offset:512' + ST1)
    A('buffer_store_dwordx4 v[64:67], v9, s[20:23], s36 offen' + ST1)
    A('buffer_store_dwordx4 v[68:71], v9, s[20:23], s37 offen' + ST1)
    stamp(A, 6)
    if STAMP: A('s_waitcnt vmcnt(0)')
    stamp(A, 7); stamp(A, 8, True)
    if STAMP: A('s_add_u32 s33, s33, 8')
    stamp_flush(A, 9, 0, 33, 20)
    A('s_endpgm')

KG_REG = 8448
KG_KC = 8 * KG_REG
KG_WO = KG_KC + 2 * 2880

def k1_kgen(A):
    A.label('k1_kgen')
    stamp(A, 0, True); stamp(A, 1)
    A('s_mov_b32 s24, s2')
    A('s_load_dwordx8 s[4:11], s[0:1], %d' % KA_LAR)
    A('s_load_dwordx4 s[12:15], s[0:1], %d' % KA_LDT)
    A('s_load_dwordx2 s[16:17], s[0:1], %d' % KA_WS)
    A('s_load_dwordx2 s[18:19], s[0:1], %d' % KA_WO)
    A('v_lshrrev_b32 v2, 6, v0')
    A('v_and_b32 v1, 63, v0')
    A('s_lshl_b32 s25, s24, 2')
    A('v_readfirstlane_b32 s33, v2')
    A('s_waitcnt lgkmcnt(0)')
    A('s_load_dword s26, s[12:13], s25')
    A('s_load_dword s27, s[14:15], s25')
    srd(A, 36, 4, 512 * 256)
    srd(A, 40, 6, 512 * 256)
    srd(A, 44, 8, 512 * 256)
    srd(A, 48, 10, 512 * 256)
    A('s_lshr_b32 s28, s33, 2')
    A('s_lshl_b32 s29, s24, 1')
    A('s_add_u32 s29, s29, s28')
    A('s_lshl_b32 s30, s29, 8')
    A('v_lshlrev_b32 v2, 2, v1')
    A('buffer_load_dword v4, v2, s[36:39], s30 offen')
    A('buffer_load_dword v5, v2, s[40:43], s30 offen')
    A('buffer_load_dword v6, v2, s[44:47], s30 offen')
    A('buffer_load_dword v7, v2, s[48:51], s30 offen')
    srd(A, 20, 16, WS_SIZE)
    srd(A, 52, 18, 512 * 1024)
    lskip = A.newlabel('kg_nowo')
    A('s_cmp_lg_u32 s33, 7')
    A('s_cbranch_scc1 %s' % lskip)
    A('s_and_b32 s31, s24, 15')
    A('s_lshr_b32 s32, s24, 4')
    A('v_lshrrev_b32 v8, 2, v1')
    A('v_lshlrev_b32 v8, 10, v8')
    A('v_and_b32 v9, 3, v1')
    A('v_lshlrev_b32 v9, 4, v9')
    A('v_add_u32 v8, v8, v9')
    A('s_lshl_b32 s34, s32, 15')
    A('s_lshl_b32 s35, s31, 6')
    A('s_add_u32 s34, s34, s35')
    A('s_mov_b32 m0, %d' % KG_WO)
    A('s_add_u32 s35, s34, 16384')
    A('buffer_load_dwordx4 v8, s[52:55], s34 offen lds')
    A('s_mov_b32 m0, %d' % (KG_WO + 1024))
    A('s_nop 0')
    A('buffer_load_dwordx4 v8, s[52:55], s35 offen lds')
    A.label(lskip)
    A('s_mul_i32 s31, s33, %d' % KG_REG)
    A('v_lshlrev_b32 v10, 3, v1')
    A('v_add_u32 v10, s31, v10')
    A('v_and_b32 v11, 15, v1')
    A('v_mul_u32_u24 v11, 528, v11')
    A('v_lshrrev_b32 v12, 4, v1')
    A('v_lshlrev_b32 v12, 4, v12')
    A('v_add3_u32 v11, v11, v12, s31')
    VW, VRD = 10, 11
    A('v_and_b32 v12, 15, v1')
    A('v_lshrrev_b32 v13, 4, v1')
    A('v_lshlrev_b32 v13, 6, v13')
    A('v_add_u32 v12, v12, v13')
    A('v_cvt_f32_u32 v12, v12')
    VB0 = 12
    A('s_mul_i32 s34, s28, 2880')
    A('s_add_u32 s34, s34, %d' % KG_KC)
    SKC = 34
    A('s_and_b32 s57, s33, 3')
    A('s_lshl_b32 s56, s57, 23')
    A('s_add_u32 s56, s56, 0x3f800000')
    A('s_waitcnt lgkmcnt(0)')
    A('s_lshl_b32 s35, s28, 4')
    A('s_lshr_b32 s26, s26, s35')
    A('s_lshl_b32 s26, s26, 16')
    A('s_lshr_b32 s27, s27, s35')
    A('s_lshl_b32 s27, s27, 16')
    L2E_HI = f2u(LOG2E)
    L2E_LO = f2u(LOG2E - struct.unpack('<f', struct.pack('<I', L2E_HI))[0])
    LN2 = f2u(math.log(2.0))
    def exp_bf16(dst, src, t0, t1):
        A('v_mul_f32 v%d, 0x%x, v%d' % (t0, L2E_HI, src))
        A('v_mov_b32 v%d, 0x%x' % (t1, L2E_HI))
        A('v_fma_f32 v%d, v%d, v%d, -v%d' % (t1, src, t1, t0))
        A('v_fmac_f32 v%d, 0x%x, v%d' % (t1, L2E_LO, src))
        A('v_exp_f32 v%d, v%d' % (t0, t0))
        A('v_mul_f32 v%d, 0x%x, v%d' % (t1, LN2, t1))
        A('v_fma_f32 v%d, v%d, v%d, v%d' % (t0, t0, t1, t0))
        A('v_cvt_pk_bf16_f32 v%d, v%d, v%d' % (t0, t0, t0))
        A('v_lshlrev_b32 v%d, 16, v%d' % (dst, t0))
    A('v_mov_b32 v13, s26')
    exp_bf16(13, 13, 14, 15)
    stamp(A, 2)
    A('s_waitcnt vmcnt(0)')
    stamp(A, 3)
    A('v_lshlrev_b32 v16, 16, v4')
    A('v_and_b32 v20, 0xffff0000, v4')
    A('v_lshlrev_b32 v17, 16, v5')
    A('v_and_b32 v21, 0xffff0000, v5')
    A('v_lshlrev_b32 v18, 16, v6')
    A('v_and_b32 v22, 0xffff0000, v6')
    A('v_lshlrev_b32 v19, 16, v7')
    A('v_and_b32 v23, 0xffff0000, v7')
    exp_bf16(16, 16, 14, 15)
    exp_bf16(20, 20, 14, 15)
    for (a2, wr, c) in ((16, 17, 18), (20, 21, 22)):
        A('v_mul_f32 v%d, v%d, v13' % (a2, a2))
        A('v_mul_f32 v%d, 0x%x, v%d' % (a2, f2u(-LOG2E), a2))
        A('v_mul_f32 v%d, s56, v%d' % (a2, a2))
        A('v_mul_f32 v%d, v%d, v13' % (wr, wr))
        A('v_mul_f32 v%d, 0x%x, v%d' % (wr, f2u(1.0 / (2 * math.pi)), wr))
        A('v_mul_f32 v%d, s56, v%d' % (wr, wr))
        A('v_mul_f32 v%d, v%d, v13' % (c, c))
        A('v_mul_f32 v%d, v%d, v13' % (c + 1, c + 1))
        A('v_add_f32 v%d, v%d, v%d' % (c, c, c))
        A('v_add_f32 v%d, v%d, v%d' % (c + 1, c + 1, c + 1))
    A('v_cmp_eq_u32 vcc, 0, v1')
    A('s_cmp_eq_u32 s57, 0')
    A('s_cselect_b32 s27, s27, 0')
    A('v_mov_b32 v14, s27')
    A('v_cndmask_b32 v14, 0, v14, vcc')
    VDSK = 14
    XA, XB, MA, MB, TA, TB = 24, 26, 28, 30, 32, 34
    P = 42
    def direct(dA, dB, p):
        lit = '0x%x' % f2u(float(p))
        A('v_mul_f32 v38, %s, v16' % lit)
        A('v_mul_f32 v39, %s, v20' % lit)
        A('v_mul_f32 v40, %s, v17' % lit)
        A('v_mul_f32 v41, %s, v21' % lit)
        A('v_exp_f32 v38, v38')
        A('v_exp_f32 v39, v39')
        A('v_fract_f32 v40, v40')
        A('v_fract_f32 v41, v41')
        A('v_cos_f32 v%d, v40' % dA)
        A('v_sin_f32 v%d, v40' % (dA + 1))
        A('v_cos_f32 v%d, v41' % dB)
        A('v_sin_f32 v%d, v41' % (dB + 1))
        A('v_mul_f32 v%d, v%d, v38' % (dA, dA))
        A('v_mul_f32 v%d, v%d, v38' % (dA + 1, dA + 1))
        A('v_mul_f32 v%d, v%d, v39' % (dB, dB))
        A('v_mul_f32 v%d, v%d, v39' % (dB + 1, dB + 1))
    def cmul2(dA, xA, yA, dB, xB, yB):
        A('v_pk_mul_f32 %s, %s, %s op_sel_hi:[1,0]' % (vr(TA, 2), vr(xA, 2), vr(yA, 2)))
        A('v_pk_mul_f32 %s, %s, %s op_sel_hi:[1,0]' % (vr(TB, 2), vr(xB, 2), vr(yB, 2)))
        A('v_pk_fma_f32 %s, %s, %s, %s op_sel:[1,1,0] op_sel_hi:[0,1,1] neg_lo:[1,0,0]' % (vr(dA, 2), vr(xA, 2), vr(yA, 2), vr(TA, 2)))
        A('v_pk_fma_f32 %s, %s, %s, %s op_sel:[1,1,0] op_sel_hi:[0,1,1] neg_lo:[1,0,0]' % (vr(dB, 2), vr(xB, 2), vr(yB, 2), vr(TB, 2)))
    kk = [0]
    def put(row, isH, xA, xB):
        neg = '-' if isH else ''
        pr = P + 2 * (kk[0] & 1); kk[0] += 1
        A('v_cvt_pk_bf16_f32 v%d, v%d, %sv%d' % (pr, xA, neg, xA + 1))
        A('v_cvt_pk_bf16_f32 v%d, v%d, %sv%d' % (pr + 1, xB, neg, xB + 1))
        A('ds_write_b64 v%d, %s offset:%d' % (VW, vr(pr, 2), row * 528))
    direct(MA, MB, 1)
    A('v_mov_b32 v46, 0x3f80')
    A('v_mov_b32 v47, 0x3f80')
    A('ds_write_b64 v%d, v[46:47] offset:0' % VW)
    put(1, False, MA, MB)
    cmul2(XA, MA, MA, XB, MB, MB)
    put(2, False, XA, XB)
    for b in range(3, 16):
        cmul2(XA, XA, MA, XB, XB, MB)
        put(b, False, XA, XB)
    stamp(A, 9)
    HA, HB, NA, NB = 48, 50, 52, 54
    direct(NA, NB, 16)
    direct(HA, HB, 128)
    cmul2(HA, HA, 18, HB, HB, 22)
    LF = 64
    A('s_waitcnt lgkmcnt(0)')
    for st in range(8):
        A('ds_read_b128 %s, v%d offset:%d' % (vr(LF + 4 * st, 4), VRD, 64 * st))
    A('s_waitcnt lgkmcnt(0)')
    stamp(A, 10)
    lj = A.newlabel('kg_j123'); lh = A.newlabel('kg_hdone')
    A('s_cmp_lg_u32 s57, 0')
    A('s_cbranch_scc1 %s' % lj)
    for r in range(8):
        put(8 + r, True, HA, HB)
        if r < 7: cmul2(HA, HA, NA, HB, HB, NB)
    A('v_mov_b32 v%d, v18' % HA); A('v_mov_b32 v%d, v19' % (HA + 1))
    A('v_mov_b32 v%d, v22' % HB); A('v_mov_b32 v%d, v23' % (HB + 1))
    for r in range(8):
        put(r, True, HA, HB)
        if r < 7: cmul2(HA, HA, NA, HB, HB, NB)
    A('s_branch %s' % lh)
    A.label(lj)
    for r in range(9):
        put(r, True, HA, HB)
        if r < 8: cmul2(HA, HA, NA, HB, HB, NB)
    A.label(lh)
    stamp(A, 11)
    ACC = 56
    FR = 96
    A('s_waitcnt lgkmcnt(0)')
    for st in range(8):
        A('ds_read_b128 %s, v%d offset:%d' % (vr(FR + 4 * st, 4), VRD, 64 * st))
    for st in range(8):
        A('s_waitcnt lgkmcnt(%d)' % (7 - st))
        c = '0' if st == 0 else vr(ACC, 4)
        A('v_mfma_f32_16x16x32_bf16 %s, %s, %s, %s' % (vr(ACC, 4), vr(FR + 4 * st, 4), vr(LF + 4 * st, 4), c))
    A('s_cmp_eq_u32 s57, 0')
    A('s_cselect_b32 s35, 0, 0x%x' % f2u(128.0))
    A('v_add_f32 v60, s35, v%d' % VB0)
    for r in range(1, 4):
        A('v_add_f32 v%d, 0x%x, v60' % (60 + r, f2u(float(16 * r))))
    for r in range(4):
        A('v_mul_f32 v%d, s56, v%d' % (60 + r, 60 + r))
    for r in range(4):
        A('v_lshrrev_b32 v%d, 15, v%d' % (60 + r, 60 + r))
        A('v_subrev_u32 v%d, 0x7efe, v%d' % (60 + r, 60 + r))
        A('v_max_i32 v%d, 0, v%d' % (60 + r, 60 + r))
        A('v_add_u32 v%d, s%d, v%d' % (60 + r, SKC, 60 + r))
    A('v_add_f32 v%d, v%d, v%d' % (ACC, ACC, VDSK))
    A('v_cvt_pk_bf16_f32 v46, v%d, v%d' % (ACC, ACC + 1))
    A('v_cvt_pk_bf16_f32 v47, v%d, v%d' % (ACC + 2, ACC + 3))
    A('s_cmp_eq_u32 s57, 0')
    A('s_cselect_b32 exec_hi, -1, 0')
    A('ds_write_b16 v60, v46')
    A('ds_write_b16_d16_hi v61, v46')
    A('ds_write_b16 v62, v47')
    A('ds_write_b16_d16_hi v63, v47')
    lnn = A.newlabel('kg_no9')
    A('s_cmp_lg_u32 s57, 3')
    A('s_cbranch_scc1 %s' % lnn)
    A('s_mov_b32 exec_lo, 0')
    A('s_mov_b32 exec_hi, 1')
    A('v_mov_b32 v60, s%d' % SKC)
    A('ds_write_b16 v60, v46 offset:%d' % (2 * 1409))
    A.label(lnn)
    A('s_mov_b64 exec, -1')
    stamp(A, 4)
    A('s_waitcnt lgkmcnt(0)')
    A('s_barrier')
    stamp(A, 5)
    A('s_lshl_b32 s35, s57, 9')
    A('v_lshlrev_b32 v16, 3, v1')
    A('v_add_u32 v16, s35, v16')
    A('v_sub_u32 v17, 2047, v16')
    A('v_cvt_f32_i32 v17, v17')
    A('v_mov_b32 v18, s%d' % SKC)
    A('s_mov_b32 s35, 0x3f7f3f7f')
    F = 20
    for e in range(8):
        if e == 0:
            A('v_mov_b32 v%d, v17' % F)
        else:
            A('v_add_f32 v%d, 0x%x, v17' % (F + e, f2u(float(-e))))
    PK = 40
    for i in range(4):
        A('v_cvt_pk_bf16_f32 v%d, v%d, v%d' % (PK + i, F + 2 * i, F + 2 * i + 1))
    for i in range(4):
        A('v_pk_sub_u16 v%d, v%d, s35 clamp' % (PK + i, PK + i))
    for i in range(4):
        A('v_pk_lshlrev_b16 v%d, 1, v%d op_sel_hi:[0,1]' % (PK + i, PK + i))
    AD = 50
    for e in range(8):
        A('v_add_u32_sdwa v%d, v%d, v18 dst_sel:DWORD dst_unused:UNUSED_PAD src0_sel:WORD_%d src1_sel:DWORD' % (AD + e, PK + e // 2, e & 1))
    VAL = 70
    for e in range(8):
        A('ds_read_u16 v%d, v%d' % (VAL + e, AD + e))
    A('v_lshlrev_b32 v19, 1, v16')
    A('s_lshl_b32 s35, s29, 12')
    A('s_add_u32 s35, s35, %d' % WS_KR)
    A('s_waitcnt lgkmcnt(0)')
    for i in range(4):
        A('v_lshl_or_b32 v%d, v%d, 16, v%d' % (88 + i, VAL + 2 * i + 1, VAL + 2 * i))
    A('buffer_store_dwordx4 v[88:91], v19, s[20:23], s35 offen' + ST1)
    lend = A.newlabel('kg_end')
    A('s_cmp_lg_u32 s33, 7')
    A('s_cbranch_scc1 %s' % lend)
    A('v_lshrrev_b32 v2, 5, v1')
    A('v_lshlrev_b32 v2, 3, v2')
    A('v_bfe_u32 v3, v1, 2, 2')
    A('v_add_u32 v2, v2, v3')
    A('v_lshlrev_b32 v2, 6, v2')
    A('v_bfe_u32 v3, v1, 4, 1')
    A('v_lshlrev_b32 v3, 1, v3')
    A('v_bfe_u32 v4, v1, 1, 1')
    A('v_add_u32 v3, v3, v4')
    A('v_and_b32 v4, 1, v1')
    A('v_lshlrev_b32 v4, 2, v4')
    A('v_add_u32 v3, v3, v4')
    A('v_lshlrev_b32 v3, 3, v3')
    A('v_add_u32 v2, v2, v3')
    A('v_add_u32 v2, %d, v2' % KG_WO)
    A('ds_read_b64_tr_b16 v[4:5], v2')
    A('ds_read_b64_tr_b16 v[6:7], v2 offset:256')
    A('ds_read_b64_tr_b16 v[8:9], v2 offset:1024')
    A('ds_read_b64_tr_b16 v[10:11], v2 offset:1280')
    A('s_and_b32 s31, s24, 15')
    A('s_lshr_b32 s32, s24, 4')
    A('s_lshl_b32 s31, s31, 5')
    A('s_lshl_b32 s32, s32, 1')
    A('s_add_u32 s31, s31, s32')
    A('s_lshl_b32 s31, s31, 10')
    A('s_add_u32 s31, s31, %d' % WS_WOF)
    A('v_lshlrev_b32 v3, 4, v1')
    A('s_waitcnt lgkmcnt(0)')
    A('buffer_store_dwordx4 v[4:7], v3, s[20:23], s31 offen' + ST1)
    A('buffer_store_dwordx4 v[8:11], v3, s[20:23], s31 offen offset:1024' + ST1)
    A.label(lend)
    stamp(A, 6)
    if STAMP: A('s_waitcnt vmcnt(0)')
    stamp(A, 7); stamp(A, 8, True)
    stamp_flush(A, 15, 0, 33, 20)
    A('s_endpgm')

def k1(A):
    A('.p2align 8')
    A('.type k1_kernel,@function')
    A.label('k1_kernel')
    A('s_cmp_ge_u32 s2, 512')
    A('s_cbranch_scc1 k1_exit')
    A('s_cmp_lt_u32 s2, 256')
    A('s_cbranch_scc1 %s' % ('k1_exit' if NOKGEN else 'k1_kgen'))
    if NOGEMM: A('s_endpgm')
    A('s_sub_u32 s2, s2, 256')
    k1_gemm(A)
    k1_kgen(A)
    A.label('k1_exit')
    A('s_endpgm')

L_K = 0
L_V = 65536
VST = 1120
L_KR = L_V + 64 * VST
L_U = L_KR + 4 * 4160
K2_LDS = L_U + 2 * 4608
K2_B2 = 12
K2_B3 = 32
NOCONV = False
NOKGEN = False
NOGEMM = False

def k2_attn(A):
    Q = 4
    KB = [8, 12]; V0 = [16, 20]; V1 = [24, 28]; P = 32; O = 40; S = [56, 72]; NM = 88
    VK, VA, VB = 2, 3, 105
    A.label('k2_attn')
    stamp(A, 0, True); stamp(A, 1)
    A('s_lshl_b32 s28, s25, 6')
    A('s_lshl_b32 s29, s26, 3')
    A('s_add_u32 s29, s29, s24')
    A('s_add_u32 s32, s28, s29')
    A('s_lshl_b32 s32, s32, 10')
    A('v_lshlrev_b32 v104, 4, v1')
    A('s_lshl_b32 s35, s24, 10')
    A('s_mul_i32 s36, s24, %d' % VST)
    for r in range(2):
        A('s_add_u32 s33, s29, %d' % (8 * r))
        A('s_and_b32 s33, s33, 63')
        A('s_add_u32 s33, s33, s28')
        A('s_lshl_b32 s33, s33, 10')
        A('s_add_u32 s34, s33, %d' % WS_VF)
        A('s_add_u32 s33, s33, %d' % WS_KF)
        A('s_add_u32 m0, s35, %d' % (L_K + r * 8192))
        A('s_nop 0')
        A('buffer_load_dwordx4 v104, s[12:15], s33 offen lds')
        if r == 0:
            A('buffer_load_dwordx4 v[4:7], v104, s[12:15], s32 offen')
        A('s_add_u32 m0, s36, %d' % (L_V + r * 8 * VST))
        A('s_nop 0')
        A('buffer_load_dwordx4 v104, s[12:15], s34 offen lds')
    A('v_and_b32 v106, 31, v1')
    A('v_lshrrev_b32 v107, 5, v1')
    A('v_lshlrev_b32 v107, 8, v107')
    A('v_lshl_add_u32 v107, v106, 4, v107')
    A('v_mov_b32 v108, 1040')
    A('v_mov_b32 v109, 1104')
    A('v_subrev_u32 v110, 20, v106')
    A('v_cmp_gt_u32 vcc, 8, v110')
    A('s_nop 1')
    A('v_cndmask_b32 v108, v108, v109, vcc')
    A('v_cmp_eq_u32 vcc, 16, v106')
    A('v_mov_b32 v109, 1024')
    A('s_nop 0')
    A('v_cndmask_b32 v108, v108, v109, vcc')
    A('v_cmp_eq_u32 vcc, 20, v106')
    A('v_mov_b32 v109, 1088')
    A('s_nop 0')
    A('v_cndmask_b32 v108, v108, v109, vcc')
    A('v_add_u32 v109, 512, v107')
    A('v_cmp_gt_u32 vcc, 16, v106')
    A('s_nop 1')
    A('v_cndmask_b32 v110, v108, v107, vcc')
    A('v_cndmask_b32 v111, v108, v109, vcc')
    A('v_add_u32 v110, %d, v110' % L_V)
    A('v_add_u32 v111, %d, v111' % L_V)
    A('s_mov_b32 s42, 0')
    stamp(A, 2)
    A('s_waitcnt vmcnt(0)')
    A('s_barrier')
    stamp(A, 3)

    def prologue(exact):
        A('v_mov_b32 v%d, v104' % VK)
        A('v_mov_b32 v%d, v110' % VA)
        A('v_mov_b32 v%d, v111' % VB)
        A('ds_read_b128 %s, v%d' % (vr(KB[0], 4), VK))
        A('ds_read_b128 %s, v%d offset:1024' % (vr(KB[1], 4), VK))
        A('ds_read_b128 %s, v%d' % (vr(V0[0], 4), VA))
        A('ds_read_b128 %s, v%d' % (vr(V1[0], 4), VB))
        for r in range(O, O + 16):
            A('v_mov_b32 v%d, 0' % r)
        for r in range(P, P + 8):
            A('v_mov_b32 v%d, 0' % r)
        for r in range(4):
            A('v_mov_b32 v%d, 0' % (V1[1] + r))
        A('s_waitcnt lgkmcnt(3)')
        A('v_mfma_f32_32x32x16_bf16 %s, %s, %s, %s' % (vr(S[0], 16), vr(KB[0], 4), vr(Q, 4), vr(NM, 16) if exact else '0'))
        A.nop(12)
    def tile(u, koff, voff, exact, do_qk=True, do_k=True, do_v=True):
        p = u & 1
        cur = S[p]; nxt = S[p ^ 1]
        def e(i): A('v_exp_f32 v%d, v%d' % (cur + i, cur + i))
        def c(i): A('v_cvt_pk_bf16_f32 v%d, v%d, v%d' % (P + i, cur + 2 * i, cur + 2 * i + 1))
        A('s_waitcnt lgkmcnt(0)')
        e(0); e(1)
        A('v_mfma_f32_32x32x16_bf16 %s, %s, %s, %s' % (vr(O, 16), vr(V1[p ^ 1], 4), vr(P + 4, 4), vr(O, 16)))
        if do_v: A('ds_read_b128 %s, v%d offset:%d' % (vr(V1[p ^ 1], 4), VB, voff))
        for i in range(2, 7): e(i)
        if do_qk: A('v_mfma_f32_32x32x16_bf16 %s, %s, %s, %s' % (vr(nxt, 16), vr(KB[p ^ 1], 4), vr(Q, 4), vr(NM, 16) if exact else '0'))
        if do_k: A('ds_read_b128 %s, v%d offset:%d' % (vr(KB[p], 4), VK, koff))
        e(7); e(8)
        for i in range(4): c(i)
        for i in range(9, 12): e(i)
        A('v_mfma_f32_32x32x16_bf16 %s, %s, %s, %s' % (vr(O, 16), vr(V0[p], 4), vr(P, 4), vr(O, 16)))
        if do_v: A('ds_read_b128 %s, v%d offset:%d' % (vr(V0[p ^ 1], 4), VA, voff))
        for i in range(12, 16): e(i)
        for i in range(4, 8): c(i)
    def final_pv():
        A('s_waitcnt lgkmcnt(0)')
        A('s_nop 0')
        A('v_mfma_f32_32x32x16_bf16 %s, %s, %s, %s' % (vr(O, 16), vr(V1[1], 4), vr(P + 4, 4), vr(O, 16)))
        A.nop(12)
    prologue(False)
    vbase = 0
    for t in range(64):
        if t == K2_B2:
            stamp(A, 6); A('s_barrier'); stamp(A, 7)
        if t == K2_B3:
            stamp(A, 11); A('s_barrier'); stamp(A, 12)
        if t == 32:
            A('v_add_u32 v%d, %d, v%d' % (VA, 32 * VST, VA))
            A('v_add_u32 v%d, %d, v%d' % (VB, 32 * VST, VB))
            vbase = 32
        tile(t, (t + 2) * 1024, (t + 1 - vbase) * VST, False, do_qk=(t < 63), do_k=(t < 62), do_v=(t < 63))
    final_pv()
    lfin = 'k2_fin'
    A('v_mov_b32 v105, 0x1f800000')
    A('v_mov_b32 v106, 0x5f800000')
    A('v_cmp_le_f32 vcc, v105, v%d' % (O + 8))
    A('v_cmp_le_f32 s[36:37], v%d, v106' % (O + 8))
    A('v_mov_b32 v105, 0x7f800000')
    A('s_nop 0')
    A('s_and_b64 vcc, vcc, s[36:37]')
    for r in range(8):
        A('v_cmp_lt_f32 s[36:37], abs(v%d), v105' % (O + r))
        A('s_nop 1')
        A('s_and_b64 vcc, vcc, s[36:37]')
    A('s_not_b64 s[36:37], vcc')
    A('s_cmp_eq_u64 s[36:37], 0')
    A('s_cbranch_scc0 k2_fallback')
    A.label(lfin)
    A('v_rcp_f32 v105, v%d' % (O + 8))
    A('s_nop 0')
    for r in range(8):
        A('v_mul_f32 v%d, v%d, v105' % (O + r, O + r))
    for i in range(4):
        A('v_cvt_pk_bf16_f32 v%d, v%d, v%d' % (108 + i, O + 2 * i, O + 2 * i + 1))
    A('s_lshl_b32 s32, s29, 5')
    A('s_add_u32 s32, s32, s25')
    A('s_lshl_b32 s32, s32, 10')
    A('s_add_u32 s32, s32, %d' % WS_OF)
    stamp(A, 8)
    A('buffer_store_dwordx4 v[108:111], v104, s[12:15], s32 offen' + ST2)
    if STAMP: A('s_waitcnt vmcnt(0)')
    stamp(A, 9); stamp(A, 10, True)
    stamp_flush(A, 13, 1, 24, 12)
    A('s_endpgm')
    A.label('k2_fallback')
    A('v_mov_b32 v105, 0xff800000')
    A('v_mov_b32 v%d, v104' % VK)
    A('s_mov_b32 s38, 0')
    A.label('k2_maxloop')
    A('ds_read_b128 %s, v%d' % (vr(KB[0], 4), VK))
    A('s_waitcnt lgkmcnt(0)')
    A('v_mfma_f32_32x32x16_bf16 %s, %s, %s, 0' % (vr(S[0], 16), vr(KB[0], 4), vr(Q, 4)))
    A.nop(14)
    for i in range(8):
        A('v_max3_f32 v105, v105, v%d, v%d' % (S[0] + 2 * i, S[0] + 2 * i + 1))
    A('v_add_u32 v%d, 1024, v%d' % (VK, VK))
    A('s_add_u32 s38, s38, 1')
    A('s_cmp_lt_u32 s38, 64')
    A('s_cbranch_scc1 k2_maxloop')
    A('v_mov_b32 v106, v105')
    A.nop(2)
    A('v_permlane32_swap_b32 v105, v106')
    A.nop(2)
    A('v_max_f32 v105, v105, v106')
    for r in range(NM, NM + 16):
        A('v_sub_f32 v%d, 0, v105' % r)
    prologue(True)
    A('s_mov_b32 s38, 0')
    A.label('k2_exloop')
    tile(0, 2048, VST, True)
    tile(1, 3072, 2 * VST, True)
    A('v_add_u32 v%d, 2048, v%d' % (VK, VK))
    A('v_add_u32 v%d, %d, v%d' % (VA, 2 * VST, VA))
    A('v_add_u32 v%d, %d, v%d' % (VB, 2 * VST, VB))
    A('s_add_u32 s38, s38, 1')
    A('s_cmp_lt_u32 s38, 32')
    A('s_cbranch_scc1 k2_exloop')
    final_pv()
    A('s_branch k2_fin')

def k2_conv(A):
    A.label('k2_conv')
    stamp(A, 0, True); stamp(A, 1)
    A('s_setprio 2')
    A('s_sub_u32 s28, s24, 8')
    A('v_lshlrev_b32 v2, 4, v1')
    A('s_mul_i32 s31, s28, 4160')
    A('s_add_u32 s31, s31, %d' % L_KR)
    A('v_mov_b32 v4, 0')
    A('v_mov_b32 v5, 0')
    A('v_lshlrev_b32 v6, 2, v1')
    A('v_add_u32 v6, s31, v6')
    A('s_mov_b32 exec_lo, 0xffff')
    A('s_mov_b32 exec_hi, 0')
    A('ds_write_b32 v6, v4 offset:4096')
    A('s_mov_b64 exec, -1')
    lz = A.newlabel('cv_nz')
    A('s_cmp_ge_u32 s28, 2')
    A('s_cbranch_scc1 %s' % lz)
    A('s_mul_i32 s33, s28, 4608')
    A('v_lshlrev_b32 v6, 3, v1')
    A('v_add_u32 v6, s33, v6')
    A('v_add_u32 v6, %d, v6' % L_U)
    A('ds_write_b64 v6, v[4:5]')
    A.label(lz)
    A('v_mul_u32_u24 v6, %d, v1' % VST)
    A('s_lshr_b32 s33, s28, 1')
    A('s_lshl_b32 s33, s33, 6')
    A('s_and_b32 s34, s28, 1')
    A('s_lshl_b32 s35, s34, 4')
    A('s_add_u32 s33, s33, s35')
    A('s_add_u32 s33, s33, %d' % (L_V + 1024))
    A('v_add_u32 v6, s33, v6')
    A('s_cmp_eq_u32 s34, 0')
    A('s_cselect_b32 s33, 0x3f803f80, 0')
    for r in range(8, 12):
        A('v_mov_b32 v%d, s33' % r)
    A('ds_write_b128 v6, v[8:11]')
    A('s_lshl_b32 s33, s26, 3')
    A('s_add_u32 s33, s33, s28')
    A('s_add_u32 s33, s33, 16')
    A('s_lshl_b32 s36, s25, 16')
    A('s_add_u32 s35, s28, 16')
    A('s_mul_i32 s39, s35, %d' % VST)
    A('s_lshl_b32 s35, s35, 10')
    A('s_waitcnt lgkmcnt(0)')
    stamp(A, 2)
    A('s_barrier')
    stamp(A, 3)
    for i in range(12):
        A('s_and_b32 s34, s33, 63')
        A('s_lshl_b32 s34, s34, 10')
        A('s_add_u32 s34, s34, s36')
        A('s_add_u32 s37, s34, %d' % WS_KF)
        A('s_add_u32 m0, s35, %d' % (L_K + i * 4096))
        A('s_add_u32 s34, s34, %d' % WS_VF)
        A('buffer_load_dwordx4 v2, s[12:15], s37 offen lds')
        A('s_add_u32 m0, s39, %d' % (L_V + i * 4 * VST))
        A('s_add_u32 s33, s33, 4')
        A('buffer_load_dwordx4 v2, s[12:15], s34 offen lds')
    lk = A.newlabel('cv_nk')
    A('s_bitcmp1_b32 s28, 0')
    A('s_cbranch_scc1 %s' % lk)
    A('s_lshl_b32 s29, s27, 13')
    A('s_lshl_b32 s30, s28, 11')
    A('s_add_u32 s29, s29, s30')
    A('s_add_u32 s29, s29, %d' % WS_KR)
    for j in range(4):
        A('s_add_u32 m0, s31, %d' % (j * 1024))
        A('s_nop 0')
        A('buffer_load_dwordx4 v2, s[12:15], s29 offen lds')
        A('s_add_u32 s29, s29, 1024')
    A.label(lk)
    A('s_waitcnt vmcnt(0) lgkmcnt(0)')
    A('s_barrier')
    stamp(A, 4)
    A('v_lshlrev_b32 v3, 11, v1')
    A('s_lshl_b32 s32, s28, 19')
    A('s_lshl_b32 s33, s27, 2')
    A('s_add_u32 s32, s32, s33')
    for q in range(4):
        A('buffer_load_dword v%d, v3, s[16:19], s32 offen' % (8 + 2 * q))
        A('buffer_load_dword v%d, v3, s[16:19], s32 offen offset:1024' % (9 + 2 * q))
        A('s_add_u32 s32, s32, %d' % (128 * 1024))
    lc = A.newlabel('cv_nc')
    A('s_bitcmp1_b32 s28, 0')
    A('s_cbranch_scc0 %s' % lc)
    A('v_add_u32 v6, s31, v2')
    for j in range(4):
        A('ds_read_b128 %s, v6 offset:%d' % (vr(16 + 4 * j, 4), 65536 - 4160 + 2 + j * 1024) if False else 'v_subrev_u32 v7, %d, v6' % (4160 - 2))
        break
    for j in range(4):
        A('ds_read_b128 %s, v7 offset:%d' % (vr(16 + 4 * j, 4), j * 1024))
    A('s_waitcnt lgkmcnt(0)')
    for j in range(4):
        A('ds_write_b128 v6, %s offset:%d' % (vr(16 + 4 * j, 4), j * 1024))
    A.label(lc)
    A('s_waitcnt vmcnt(0)')
    stamp(A, 5)
    A('s_mov_b32 s34, 0x05040100')
    A('s_mov_b32 s35, 0x07060302')
    A('v_lshlrev_b32 v6, 2, v1')
    A('s_lshl_b32 s33, s28, 10')
    A('s_add_u32 s33, s33, %d' % (L_U + 512))
    A('v_add_u32 v6, s33, v6')
    for q in range(4):
        A('v_perm_b32 v%d, v%d, v%d, s34' % (16 + 2 * q, 9 + 2 * q, 8 + 2 * q))
        A('v_perm_b32 v%d, v%d, v%d, s35' % (17 + 2 * q, 9 + 2 * q, 8 + 2 * q))
    for q in range(4):
        A('ds_write_b32 v6, v%d offset:%d' % (16 + 2 * q, 256 * q))
        A('ds_write_b32 v6, v%d offset:%d' % (17 + 2 * q, 256 * q + 4608))
    A('v_and_b32 v7, 15, v1')
    A('v_lshrrev_b32 v8, 4, v1')
    A('v_and_b32 v9, 1, v1')
    A('v_lshlrev_b32 v10, 3, v8')
    A('v_add_u32 v10, v10, v7')
    A('v_sub_u32 v10, v9, v10')
    A('v_add_u32 v10, 2054, v10')
    A('v_lshlrev_b32 v10, 1, v10')
    A('v_xor_b32 v9, 1, v9')
    A('v_mul_u32_u24 v9, 4160, v9')
    A('v_add_u32 v10, v10, v9')
    A('v_add_u32 v10, %d, v10' % (L_KR - 448))
    A('v_add_u32 v11, 8320, v10')
    A('v_lshlrev_b32 v12, 5, v7')
    A('v_lshlrev_b32 v13, 4, v8')
    A('v_sub_u32 v12, v12, v13')
    A('v_add_u32 v12, %d, v12' % (L_U + 528 - 448))
    A('s_lshl_b32 s33, s28, 9')
    A('v_add_u32 v13, s33, v12')
    A('s_sub_u32 s36, 7, s28')
    A('s_lshl_b32 s33, s36, 9')
    A('v_add_u32 v12, s33, v12')
    VKA, VKB_, VUA, VUB = 10, 11, 13, 12
    ACC = 16
    for r in range(ACC, ACC + 16):
        A('v_mov_b32 v%d, 0' % r)
    A('s_waitcnt lgkmcnt(0)')
    stamp(A, 6)
    A('s_barrier')
    stamp(A, 7)
    KF = [32, 40]
    UF = [48, 64]
    def kreads(k, buf):
        o = (7 - k) * 16
        for ci, va in ((0, VKA), (1, VKB_)):
            A('ds_read2_b32 %s, v%d offset0:%d offset1:%d' % (vr(KF[buf] + 4 * ci, 2), va, o, o + 1))
            A('ds_read2_b32 %s, v%d offset0:%d offset1:%d' % (vr(KF[buf] + 4 * ci + 2, 2), va, o + 2, o + 3))
    def ureads(k, buf, both):
        o = (7 - k) * 64
        if both:
            A('ds_read_b128 %s, v%d offset:%d' % (vr(UF[buf], 4), VUA, o))
            A('ds_read_b128 %s, v%d offset:%d' % (vr(UF[buf] + 4, 4), VUA, o + 4608))
        A('ds_read_b128 %s, v%d offset:%d' % (vr(UF[buf] + 8, 4), VUB, o))
        A('ds_read_b128 %s, v%d offset:%d' % (vr(UF[buf] + 12, 4), VUB, o + 4608))
    def mf(buf, both):
        lst = [(0, 0), (1, 1), (2, 0), (3, 1)] if both else [(2, 0), (3, 1)]
        for (ai, ci) in lst:
            acc = vr(ACC + 4 * ai, 4)
            A('v_mfma_f32_16x16x32_bf16 %s, %s, %s, %s' % (acc, vr(UF[buf] + 4 * ai, 4), vr(KF[buf] + 4 * ci, 4), acc))
    def block(both):
        nu = 4 if both else 2
        kreads(0, 0); ureads(0, 0, both)
        for k in range(8):
            buf = k & 1
            if k < 7:
                kreads(k + 1, buf ^ 1)
                A('s_waitcnt lgkmcnt(4)')
                ureads(k + 1, buf ^ 1, both)
            else:
                A('s_waitcnt lgkmcnt(0)')
            mf(buf, both)
        for v in (VKA, VKB_, VUB) + ((VUA,) if both else ()):
            A('v_subrev_u32 v%d, 512, v%d' % (v, v))
    if NOCONV:
        A('s_endpgm')
    A('s_mov_b32 s38, 0')
    A.label('cv_loop1')
    block(True)
    A('s_add_u32 s38, s38, 1')
    A('s_cmp_le_u32 s38, s28')
    A('s_cbranch_scc1 cv_loop1')
    A.label('cv_loop2')
    block(False)
    A('s_add_u32 s38, s38, 1')
    A('s_cmp_le_u32 s38, s36')
    A('s_cbranch_scc1 cv_loop2')
    stamp(A, 8)
    A.nop(8)
    A('v_lshlrev_b32 v8, 6, v8')
    A('v_add_u32 v8, v8, v7')
    A('v_lshlrev_b32 v8, 11, v8')
    A('s_lshl_b32 s33, s27, 2')
    A('s_add_u32 s33, s33, 1024')
    for (T, a) in ((28, 0), (36, 2)):
        A('s_lshl_b32 s34, s%d, 19' % T)
        A('s_add_u32 s34, s34, s33')
        for r in range(4):
            d = 80 + 4 * (a // 2) + r
            A('v_cvt_pk_bf16_f32 v%d, v%d, v%d' % (d, ACC + 4 * a + r, ACC + 4 * (a + 1) + r))
            A(('buffer_store_dword v%d, v8, s[20:23], s34 offen' % d) + ST2C)
            A('s_add_u32 s34, s34, 32768')
    if STAMP: A('s_waitcnt vmcnt(0)')
    stamp(A, 9); stamp(A, 10, True)
    stamp_flush(A, 11, 1, 24, 12)
    A('s_endpgm')

def k2(A):
    A('.p2align 8')
    A('.type k2_kernel,@function')
    A.label('k2_kernel')
    A('s_cmp_ge_u32 s2, 256')
    A('s_cbranch_scc1 k2_exit')
    A('s_load_dwordx2 s[4:5], s[0:1], %d' % KA_WS)
    A('s_load_dwordx2 s[6:7], s[0:1], %d' % KA_U)
    A('s_load_dwordx2 s[8:9], s[0:1], %d' % KA_OUT)
    A('v_lshrrev_b32 v2, 6, v0')
    A('v_and_b32 v1, 63, v0')
    A('s_and_b32 s28, s2, 7')
    A('v_readfirstlane_b32 s24, v2')
    A('s_lshr_b32 s29, s2, 3')
    A('s_lshl_b32 s25, s28, 2')
    A('s_and_b32 s30, s29, 3')
    A('s_add_u32 s25, s25, s30')
    A('s_lshr_b32 s26, s29, 2')
    A('s_lshl_b32 s27, s28, 5')
    A('s_add_u32 s27, s27, s29')
    A('s_waitcnt lgkmcnt(0)')
    srd(A, 12, 4, WS_SIZE)
    srd(A, 16, 6, 2048 * 1024)
    srd(A, 20, 8, 2048 * 2048)
    A('s_cmp_ge_u32 s24, 8')
    A('s_cbranch_scc1 k2_conv')
    k2_attn(A)
    k2_conv(A)
    A.label('k2_exit')
    A('s_endpgm')

def k3(A):
    A('.p2align 8')
    A('.type k3_kernel,@function')
    A.label('k3_kernel')
    A('s_cmp_ge_u32 s2, 256')
    A('s_cbranch_scc1 k3_exit')
    stamp(A, 0, True); stamp(A, 1)
    A('s_load_dwordx2 s[4:5], s[0:1], %d' % KA_WS)
    A('s_load_dwordx2 s[8:9], s[0:1], %d' % KA_OUT)
    A('v_lshrrev_b32 v2, 6, v0')
    A('v_and_b32 v1, 63, v0')
    A('s_and_b32 s28, s2, 7')
    A('v_readfirstlane_b32 s24, v2')
    A('s_lshr_b32 s29, s2, 3')
    A('s_lshl_b32 s25, s28, 2')
    A('s_and_b32 s30, s29, 3')
    A('s_add_u32 s25, s25, s30')
    A('s_lshr_b32 s26, s29, 2')
    A('v_lshlrev_b32 v2, 4, v1')
    A('s_waitcnt lgkmcnt(0)')
    srd(A, 12, 4, WS_SIZE)
    srd(A, 20, 8, 2048 * 2048)
    A('s_cmp_lt_u32 s24, 4')
    A('s_cbranch_scc1 k3_comp')
    A('s_sub_u32 s31, s24, 4')
    A('s_and_b32 s32, s31, 1')
    A('s_lshl_b32 s33, s25, 1')
    A('s_add_u32 s33, s33, s32')
    A('s_lshl_b32 s33, s33, 15')
    A('s_add_u32 s33, s33, %d' % WS_OF)
    A('s_lshl_b32 s34, s26, 1')
    A('s_add_u32 s34, s34, s32')
    A('s_lshl_b32 s34, s34, 15')
    A('s_add_u32 s34, s34, %d' % WS_WOF)
    A('s_cmp_ge_u32 s31, 2')
    A('s_cselect_b32 s33, s34, s33')
    A('s_lshl_b32 s35, s31, 15')
    A('s_lshl_b32 s36, s25, 1')
    A('s_add_u32 s36, s36, s26')
    def grp(g):
        A('s_add_u32 s37, s36, %d' % g)
        A('s_and_b32 s37, s37, 7')
        A('s_lshl_b32 s37, s37, 12')
        A('s_add_u32 s37, s37, s33')
        for j in range(4):
            A('s_add_u32 m0, s35, %d' % ((4 * g + j) * 1024))
            A('s_nop 0')
            A('buffer_load_dwordx4 v2, s[12:15], s37 offen lds')
            if j < 3: A('s_add_u32 s37, s37, 1024')
    grp(0); grp(1); grp(2)
    stamp(A, 2)
    for g in range(8):
        issued = min(g + 3, 8)
        A('s_waitcnt vmcnt(%d)' % (4 * (issued - g - 1)))
        A('s_barrier')
        if g == 0: stamp(A, 3)
        if g + 3 < 8:
            grp(g + 3)
    stamp(A, 4); stamp(A, 5); stamp(A, 6); stamp(A, 7); stamp(A, 8); stamp(A, 9, True)
    stamp_flush(A, 10, 2, 24, 12)
    A('s_endpgm')
    A.label('k3_comp')
    A('s_lshr_b32 s31, s24, 1')
    A('s_and_b32 s32, s24, 1')
    A('s_lshl_b32 s33, s31, 15')
    A('v_add_u32 v3, s33, v2')
    A('s_lshl_b32 s33, s32, 15')
    A('s_add_u32 s33, s33, 65536')
    A('v_add_u32 v4, s33, v2')
    ACC = 16
    FB = [32, 64]
    stamp(A, 2)
    for g in range(9):
        A('s_waitcnt lgkmcnt(0)')
        if g < 8:
            A('s_barrier')
            if g == 0: stamp(A, 3)
            b = FB[g & 1]
            for j in range(4):
                A('ds_read_b128 %s, v3 offset:%d' % (vr(b + 8 * j, 4), (4 * g + j) * 1024))
                A('ds_read_b128 %s, v4 offset:%d' % (vr(b + 8 * j + 4, 4), (4 * g + j) * 1024))
        if g > 0:
            b = FB[(g - 1) & 1]
            for j in range(4):
                c = '0' if (g == 1 and j == 0) else vr(ACC, 16)
                A('v_mfma_f32_32x32x16_bf16 %s, %s, %s, %s' % (vr(ACC, 16), vr(b + 8 * j + 4, 4), vr(b + 8 * j, 4), c))
    stamp(A, 4)
    A('s_lshl_b32 s37, s31, 5')
    A('s_lshl_b32 s38, s25, 6')
    A('s_add_u32 s37, s37, s38')
    A('s_lshl_b32 s37, s37, 11')
    A('s_lshl_b32 s38, s32, 6')
    A('s_lshl_b32 s39, s26, 7')
    A('s_add_u32 s38, s38, s39')
    A('s_add_u32 s37, s37, s38')
    A('v_and_b32 v5, 31, v1')
    A('v_lshlrev_b32 v5, 11, v5')
    A('v_lshrrev_b32 v6, 5, v1')
    A('v_lshlrev_b32 v6, 5, v6')
    A('v_add_u32 v5, v5, v6')
    A.nop(8)
    for i in range(8):
        A('v_cvt_pk_bf16_f32 v%d, v%d, v%d' % (96 + i, ACC + 2 * i, ACC + 2 * i + 1))
    stamp(A, 5); stamp(A, 6)
    A('buffer_store_dwordx4 v[96:99], v5, s[20:23], s37 offen' + ST3)
    A('buffer_store_dwordx4 v[100:103], v5, s[20:23], s37 offen offset:16' + ST3)
    stamp(A, 7)
    if STAMP: A('s_waitcnt vmcnt(0)')
    stamp(A, 8); stamp(A, 9, True)
    stamp_flush(A, 10, 2, 24, 12)
    A.label('k3_exit')
    A('s_endpgm')

VGPRS = {'k1': 128, 'k2': 112, 'k3': 104}
```

```python
import sys
from gen import *
import gen
def build(path, kernels):
    A = Asm()
    hdr = open('cdna_kernels/%s.s.ref' % NAME).read().split('\n')
    head = []
    for l in hdr:
        if l.startswith('; @launch') or l.startswith('; Override') or l.startswith('; grid='):
            continue
        if not l.startswith(';'):
            break
        head.append(l)
    launches = {'k1': 'grid=(256,1,1) block=(768,1,1) lds=%d' % gen.K1_LDS,
                'k2': 'grid=(256,1,1) block=(768,1,1) lds=%d' % getattr(gen, 'K2_LDS', 163840),
                'k3': 'grid=(256,1,1) block=(512,1,1) lds=131072'}
    for k in kernels:
        head.append('; @launch kernel=%s_kernel %s' % (k, launches[k]))
    out = '\n'.join(head) + '\n.amdgcn_target "amdgcn-amd-amdhsa--gfx950"\n.text\n'
    for k in kernels:
        out += '.globl %s_kernel\n' % k
        getattr(gen, k)(A)
    out += A.text()
    out += '.section .rodata,"a"\n'
    for k in kernels:
        out += '.p2align 6\n' + kernel_desc(k + '_kernel', gen.VGPRS[k], extra=('  .amdhsa_ieee_mode 0\n' if (k == 'k1' and gen.OMOD) else ''))
    open(path, 'w').write(out)
if __name__ == '__main__':
    if len(sys.argv) > 3 and sys.argv[3] == 'stamp': gen.STAMP = True
    for kv in sys.argv[3:]:
        if '=' in kv:
            k, v = kv.split('=', 1); setattr(gen, k, eval(v))
    build(sys.argv[1], sys.argv[2].split(','))
```

```python
import sys, math, struct
from asmlib import *

NAME = 'concat_heads__mha_block__ssm_conv_s4d__prompt'
WS_QF = 0
WS_KF = 2 << 20
WS_VF = 4 << 20
WS_OF = 6 << 20
WS_WOF = 8 << 20
WS_KR = 9 << 20
WS_SIZE = 256 << 20
KA_X, KA_WQKV, KA_WO, KA_U, KA_LAR, KA_AI, KA_CR, KA_CI, KA_LDT, KA_DSK, KA_OUT, KA_DBG, KA_WS = [8 * i for i in range(13)]

STAMP = False
ST1 = ''
ST2 = ''
ST2C = ''
ST3 = ''
WS_STAMP = 64 << 20
def stamp(A, i, real=False):
    if not STAMP: return
    A('s_memtime s[%d:%d]' % (64 + 2 * i, 65 + 2 * i)) if not real else A('s_memrealtime s[%d:%d]' % (64 + 2 * i, 65 + 2 * i))
    A('s_waitcnt lgkmcnt(0)')
def stamp_flush(A, n, kidx, wave_sgpr, srd_base):
    if not STAMP: return
    A('s_waitcnt vmcnt(0) lgkmcnt(0)')
    A('s_lshl_b32 s62, s2, 4')
    A('s_add_u32 s62, s62, s%d' % wave_sgpr)
    A('s_lshl_b32 s62, s62, 6')
    A('s_add_u32 s62, s62, %d' % (WS_STAMP + kidx * (1 << 20)))
    A('s_mov_b64 exec, 1')
    A('v_mov_b32 v0, 0')
    for i in range(n):
        A('v_mov_b32 v1, s%d' % (64 + 2 * i))
        A('buffer_store_dword v1, v0, s[%d:%d], s62 offen offset:%d' % (srd_base, srd_base + 3, 4 * i))
    A('s_waitcnt vmcnt(0)')

def f2u(f):
    return struct.unpack('<I', struct.pack('<f', f))[0]
LOG2E = 1.4426950408889634
QSCALE = 0.25 * LOG2E


G_X = 0
G_W = 65536
KG_PT = G_W + 65536
KG_KC = KG_PT + 4096
KG_TS = 5696
KG_WO = KG_KC + 4 * KG_TS
K1_LDS = KG_WO + 2048

def k1_loader(A):
    A.label('k1_load')
    A('s_sub_u32 s33, s33, 4')
    A('s_lshl_b32 s28, s27, 1')
    A('s_add_u32 s28, s28, s26')
    A('s_and_b32 s28, s28, 7')
    A('s_lshl_b32 s29, s33, 10')
    A('s_add_u32 s29, s29, %d' % G_W)
    A('s_lshl_b32 s30, s33, 11')
    A('s_lshl_b32 s31, s26, 6')
    A('s_lshl_b32 s32, s33, 4')
    A('s_add_u32 s31, s31, s32')
    A('v_lshrrev_b32 v9, 3, v1')
    A('v_add_u32 v2, s31, v9')
    A('v_lshlrev_b32 v2, 10, v2')
    A('v_lshrrev_b32 v10, 1, v9')
    A('v_xor_b32 v10, v10, v1')
    A('v_and_b32 v10, 7, v10')
    A('v_lshlrev_b32 v10, 4, v10')
    A('v_add_u32 v3, v2, v10')
    A('v_xor_b32 v10, 64, v10')
    A('v_add_u32 v2, v2, v10')
    A('v_add_u32 v2, 8192, v2')
    A('s_lshl_b32 s32, s33, 3')
    A('v_add_u32 v10, s32, v9')
    A('v_mul_u32_u24 v4, 3072, v10')
    A('v_bfe_u32 v11, v9, 1, 1')
    A('v_lshlrev_b32 v11, 2, v11')
    A('v_xor_b32 v11, v11, v1')
    A('v_and_b32 v11, 7, v11')
    A('v_lshlrev_b32 v11, 4, v11')
    A('s_lshl_b32 s32, s27, 7')
    A('v_add3_u32 v4, v4, v11, s32')
    A('v_add_u32 v5, 1024, v4')
    A('v_add_u32 v12, 2048, v4')
    A('s_waitcnt lgkmcnt(0)')
    srd(A, 12, 4, 2048 * 1024)
    srd(A, 16, 6, 512 * 3072)
    def koff(piece, half):
        A('s_add_u32 s36, s28, %d' % piece)
        A('s_and_b32 s36, s36, 7')
    def need(j):
        if j < 8:
            koff(j, 0)
            A('s_lshl_b32 s37, s36, 7')
            A('s_mul_i32 s38, s36, %d' % (64 * 3072))
            A('s_add_u32 m0, s30, %d' % (G_X + j * 8192))
            A('s_add_u32 s39, s38, %d' % (32 * 3072))
            A('buffer_load_dwordx4 v3, s[12:15], s37 offen lds')
            A('s_add_u32 m0, s30, %d' % (G_X + j * 8192 + 1024))
            A('s_nop 0')
            A('buffer_load_dwordx4 v2, s[12:15], s37 offen lds')
            for h, so in ((0, 38), (1, 39)):
                slot = ((2 * j + h) % 8) * 8192
                A('s_add_u32 m0, s29, %d' % slot)
                A('s_nop 0')
                A('buffer_load_dwordx4 v5, s[16:19], s%d offen lds' % so)
                A('s_add_u32 m0, s29, %d' % (slot + 4096))
                A('s_nop 0')
                A('buffer_load_dwordx4 v12, s[16:19], s%d offen lds' % so)
            return 6
        jj = j - 8
        koff(jj, 0)
        A('s_mul_i32 s38, s36, %d' % (64 * 3072))
        A('s_add_u32 s39, s38, %d' % (32 * 3072))
        for h, so in ((0, 38), (1, 39)):
            A('s_add_u32 m0, s29, %d' % ((2 * jj + h) * 4096))
            A('s_nop 0')
            A('buffer_load_dwordx4 v4, s[16:19], s%d offen lds' % so)
        return 2
    issued = []
    def iss(j): issued.append((j, need(j)))
    iss(0); iss(1)
    stamp(A, 2)
    sched = {0: [2, 3], 1: [4], 2: [5], 3: [6], 4: [7], 5: [8, 9], 6: [10, 11], 7: [12, 13], 8: [14, 15]}
    for j in range(16):
        pos = max(i for i, (jj, n) in enumerate(issued) if jj == j)
        later = sum(n for (jj, n) in issued[pos + 1:])
        A('s_waitcnt vmcnt(%d)' % later)
        A('s_barrier')
        if j == 0: stamp(A, 3)
        for jn in sched.get(j, []): iss(jn)
    A('s_add_u32 s33, s33, 4')
    stamp(A, 4); stamp(A, 5); stamp(A, 6); stamp(A, 7); stamp(A, 8, True)
    if STAMP: srd(A, 20, 8, WS_SIZE)
    stamp_flush(A, 9, 0, 33, 20)
    A('s_endpgm')

def k1_comp(A):
    A.label('k1_comp')
    A('s_and_b32 s34, s33, 1')
    A('s_lshr_b32 s35, s33, 1')
    A('v_and_b32 v9, 31, v1')
    A('v_lshrrev_b32 v10, 5, v1')
    A('v_bfe_u32 v11, v1, 1, 3')
    A('v_xor_b32 v11, v11, v10')
    A('v_lshlrev_b32 v11, 4, v11')
    A('v_lshlrev_b32 v9, 7, v9')
    A('s_lshl_b32 s36, s34, 12')
    A('v_add3_u32 v6, v9, v11, s36')
    A('v_xor_b32 v7, 32, v6')
    A('v_xor_b32 v13, 64, v6')
    A('v_xor_b32 v14, 96, v6')
    A('v_lshrrev_b32 v9, 5, v1')
    A('v_lshlrev_b32 v9, 3, v9')
    A('v_bfe_u32 v10, v1, 2, 2')
    A('v_add_u32 v9, v9, v10')
    A('v_lshlrev_b32 v9, 7, v9')
    A('v_bfe_u32 v10, v1, 3, 1')
    A('v_xor_b32 v10, s35, v10')
    A('v_lshlrev_b32 v10, 6, v10')
    A('v_add_u32 v9, v9, v10')
    A('v_bfe_u32 v10, v1, 4, 1')
    A('v_lshlrev_b32 v10, 5, v10')
    A('v_and_b32 v11, 1, v1')
    A('v_lshlrev_b32 v11, 4, v11')
    A('v_add3_u32 v9, v9, v10, v11')
    A('v_bfe_u32 v10, v1, 1, 1')
    A('v_lshlrev_b32 v10, 3, v10')
    A('v_add_u32 v8, v9, v10')
    A('v_add_u32 v8, %d, v8' % G_W)
    AK, AV, AQ = 16, 32, 48
    for r in range(16, 64):
        A('v_mov_b32 v%d, 0' % r)
    A('s_waitcnt lgkmcnt(0)')
    srd(A, 20, 8, WS_SIZE)
    XR = [6, 7, 13, 14]
    FB = [64, 112]
    def reads(j):
        b = FB[j & 1]; L = []
        piece = j if j < 8 else j - 8
        for ks in range(4):
            r0 = b + 12 * ks
            L.append('ds_read_b128 %s, v%d offset:%d' % (vr(r0, 4), XR[ks], G_X + piece * 8192))
            h = ks >> 1; k2_ = ks & 1
            if j < 8:
                o = ((2 * j + h) % 8) * 8192 + k2_ * 2048
                for sec in range(2):
                    L.append('ds_read_b64_tr_b16 %s, v8 offset:%d' % (vr(r0 + 4 + 4 * sec, 2), o + sec * 4096))
                    L.append('ds_read_b64_tr_b16 %s, v8 offset:%d' % (vr(r0 + 6 + 4 * sec, 2), o + sec * 4096 + 512))
            else:
                o = (2 * (j - 8) + h) * 4096 + k2_ * 2048
                L.append('ds_read_b64_tr_b16 %s, v8 offset:%d' % (vr(r0 + 4, 2), o))
                L.append('ds_read_b64_tr_b16 %s, v8 offset:%d' % (vr(r0 + 6, 2), o + 512))
        return L
    def mfmas(j):
        b = FB[j & 1]; L = []
        for ks in range(4):
            r0 = b + 12 * ks
            if j < 8:
                L.append('v_mfma_f32_32x32x16_bf16 %s, %s, %s, %s' % (vr(AK, 16), vr(r0 + 4, 4), vr(r0, 4), vr(AK, 16)))
                L.append('v_mfma_f32_32x32x16_bf16 %s, %s, %s, %s' % (vr(AV, 16), vr(r0, 4), vr(r0 + 8, 4), vr(AV, 16)))
            else:
                L.append('v_mfma_f32_32x32x16_bf16 %s, %s, %s, %s' % (vr(AQ, 16), vr(r0 + 4, 4), vr(r0, 4), vr(AQ, 16)))
        return L
    A('s_lshl_b32 s36, s27, 2')
    A('s_lshl_b32 s37, s35, 1')
    A('s_add_u32 s36, s36, s37')
    A('s_lshl_b32 s36, s36, 6')
    A('s_lshl_b32 s37, s26, 1')
    A('s_add_u32 s36, s36, s37')
    A('s_add_u32 s36, s36, s34')
    A('s_lshl_b32 s36, s36, 10')
    A('s_add_u32 s37, s36, %d' % (64 * 1024))
    A('v_lshlrev_b32 v9, 4, v1')
    A('v_bfe_u32 v10, v1, 4, 1')
    A('v_lshlrev_b32 v10, 16, v10')
    A('v_lshrrev_b32 v11, 5, v1')
    A('v_lshlrev_b32 v11, 8, v11')
    A('v_and_b32 v12, 15, v1')
    A('v_lshlrev_b32 v12, 4, v12')
    A('v_add3_u32 v10, v10, v11, v12')
    A('s_add_u32 s38, s36, %d' % WS_KF)
    A('s_add_u32 s39, s37, %d' % WS_KF)
    A('s_add_u32 s40, s36, %d' % WS_VF)
    stamp(A, 2)
    for j in range(17):
        A('s_waitcnt lgkmcnt(0)')
        R = []
        if j < 16:
            if STAMP2 and j in (0,1,2,3,4,5,6,7): stamp(A, 9 + (j if j < 7 else 6))
            A('s_barrier')
            if j == 0: stamp(A, 3)
            if STAMP2B and j >= 8: stamp(A, 9 + (j - 8) if j < 15 else 15)
            R = reads(j) if not NOCOMP else []
        M = mfmas(j - 1) if (j > 0 and not NOCOMP) else []
        ri = 0
        if not M:
            for l in R: A(l)
        per = 5 if j < 8 else 4
        for mi, m in enumerate(M):
            A(m)
            for l in R[ri:ri + per]: A(l)
            ri += per
        for l in (R[ri:] if M else []): A(l)
        if j == 8: stamp(A, 4)
        if j == 9:
            for i in range(8):
                A('v_cvt_pk_bf16_f32 v%d, v%d, v%d' % (AK + i, AK + 2 * i, AK + 2 * i + 1))
            A('buffer_store_dwordx4 %s, v9, s[20:23], s38 offen%s' % (vr(AK, 4), ST1))
            A('buffer_store_dwordx4 %s, v9, s[20:23], s39 offen%s' % (vr(AK + 4, 4), ST1))
        if j == 10:
            for i in range(8):
                A('v_cvt_pk_bf16_f32 v%d, v%d, v%d' % (AV + i, AV + 2 * i, AV + 2 * i + 1))
            A('buffer_store_dwordx4 %s, v10, s[20:23], s40 offen%s' % (vr(AV, 4), ST1))
            A('buffer_store_dwordx4 %s, v10, s[20:23], s40 offen offset:512%s' % (vr(AV + 4, 4), ST1))
    stamp(A, 5)
    A.nop(12)
    A('s_mov_b32 s41, 0x%x' % f2u(QSCALE))
    for r in range(16):
        A('v_mul_f32 v%d, s41, v%d' % (AQ + r, AQ + r))
    for i in range(8):
        A('v_cvt_pk_bf16_f32 v%d, v%d, v%d' % (AQ + i, AQ + 2 * i, AQ + 2 * i + 1))
    A('buffer_store_dwordx4 %s, v9, s[20:23], s36 offen%s' % (vr(AQ, 4), ST1))
    A('buffer_store_dwordx4 %s, v9, s[20:23], s37 offen%s' % (vr(AQ + 4, 4), ST1))
    stamp(A, 6)
    if STAMP: A('s_waitcnt vmcnt(0)')
    stamp(A, 7); stamp(A, 8, True)
    stamp_flush(A, 16, 0, 33, 20)
    A('s_endpgm')

def k1_kgen(A):
    A.label('k1_kgen')
    A('s_load_dwordx8 s[12:19], s[0:1], %d' % KA_LAR)
    A('s_load_dwordx4 s[56:59], s[0:1], %d' % KA_LDT)
    A('s_load_dwordx2 s[44:45], s[0:1], %d' % KA_WO)
    A('s_sub_u32 s33, s33, 8')
    A('s_lshl_b32 s24, s24, 5')
    A('s_add_u32 s24, s24, s25')
    A('s_lshr_b32 s28, s33, 1')
    A('s_and_b32 s32, s33, 1')
    A('s_lshl_b32 s29, s24, 1')
    A('s_add_u32 s29, s29, s28')
    A('s_lshl_b32 s30, s29, 8')
    A('s_lshl_b32 s31, s32, 7')
    A('s_add_u32 s30, s30, s31')
    A('s_lshl_b32 s25, s24, 2')
    A('v_lshlrev_b32 v2, 1, v1')
    A('s_waitcnt lgkmcnt(0)')
    A('s_load_dword s26, s[56:57], s25')
    A('s_load_dword s27, s[58:59], s25')
    srd(A, 36, 12, 512 * 256)
    srd(A, 40, 14, 512 * 256)
    srd(A, 48, 16, 512 * 256)
    srd(A, 52, 18, 512 * 256)
    A('buffer_load_ushort v4, v2, s[36:39], s30 offen')
    A('buffer_load_ushort v5, v2, s[40:43], s30 offen')
    A('buffer_load_ushort v6, v2, s[48:51], s30 offen')
    A('buffer_load_ushort v7, v2, s[52:55], s30 offen')
    srd(A, 20, 8, WS_SIZE)
    srd(A, 60, 44, 512 * 1024)
    A('s_mov_b32 s12, s32')
    lskip = A.newlabel('kg_nowo')
    A('s_cmp_lg_u32 s33, 3')
    A('s_cbranch_scc1 %s' % lskip)
    A('s_and_b32 s31, s24, 15')
    A('s_lshr_b32 s32, s24, 4')
    A('v_lshrrev_b32 v8, 2, v1')
    A('v_lshlrev_b32 v8, 10, v8')
    A('v_and_b32 v9, 3, v1')
    A('v_lshlrev_b32 v9, 4, v9')
    A('v_add_u32 v8, v8, v9')
    A('s_lshl_b32 s34, s32, 15')
    A('s_lshl_b32 s35, s31, 6')
    A('s_add_u32 s34, s34, s35')
    A('s_mov_b32 m0, %d' % KG_WO)
    A('s_add_u32 s35, s34, 16384')
    A('buffer_load_dwordx4 v8, s[60:63], s34 offen lds')
    A('s_mov_b32 m0, %d' % (KG_WO + 1024))
    A('s_nop 0')
    A('buffer_load_dwordx4 v8, s[60:63], s35 offen lds')
    A.label(lskip)
    A('s_mul_i32 s34, s33, %d' % KG_TS)
    A('s_add_u32 s34, s34, %d' % KG_KC)
    A('s_mul_i32 s13, s28, %d' % (2 * KG_TS))
    A('s_add_u32 s13, s13, %d' % KG_KC)
    SKC = 34
    A('v_and_b32 v12, 15, v1')
    A('v_cvt_f32_u32 v13, v12')
    PB = 13
    A('s_lshl_b32 s35, s28, 11')
    A('s_lshl_b32 s31, s12, 10')
    A('s_add_u32 s35, s35, s31')
    A('s_add_u32 s35, s35, %d' % KG_PT)
    A('v_lshlrev_b32 v10, 4, v1')
    A('v_add_u32 v10, s35, v10')
    A('v_lshrrev_b32 v11, 4, v1')
    A('v_lshlrev_b32 v11, 6, v11')
    A('v_add_u32 v11, s35, v11')
    CA = 136
    A('v_lshrrev_b32 v16, 4, v1')
    A('v_lshlrev_b32 v16, 6, v16')
    A('v_add_u32 v16, v16, v12')
    A('v_cvt_f32_u32 v16, v16')
    for r in range(4):
        d = CA + r
        if r: A('v_add_f32 v%d, 0x%x, v16' % (d, f2u(float(16 * r))))
        else: A('v_mov_b32 v%d, v16' % d)
        A('v_lshrrev_b32 v%d, 14, v%d' % (d, d))
        A('v_subrev_u32 v%d, 0x%x, v%d' % (d, 4 * 0x3f7f, d))
        A('v_max_i32 v%d, 0, v%d' % (d, d))
        A('v_add_u32 v%d, s%d, v%d' % (d, SKC, d))
    GP = 152
    A('s_lshl_b32 s35, s12, 10')
    A('v_lshlrev_b32 v14, 3, v1')
    A('v_add_u32 v14, s35, v14')
    A('v_sub_u32 v17, 2047, v14')
    A('v_cvt_f32_i32 v17, v17')
    A('s_mov_b32 s35, 0x3f7f3f7f')
    for i in range(8):
        d0 = ((2 * i) & 7) + 512 * ((2 * i) >> 3); d1 = d0 + 1
        A('v_add_f32 v18, 0x%x, v17' % f2u(float(-d0)))
        A('v_add_f32 v19, 0x%x, v17' % f2u(float(-d1)))
        A('v_cvt_pk_bf16_f32 v%d, v18, v19' % (GP + i))
    for i in range(8):
        A('v_pk_sub_u16 v%d, v%d, s35 clamp' % (GP + i, GP + i))
    for i in range(8):
        A('v_pk_lshlrev_b16 v%d, 2, v%d op_sel_hi:[0,1]' % (GP + i, GP + i))
    A('s_waitcnt lgkmcnt(0)')
    A('s_lshl_b32 s35, s28, 4')
    A('s_lshr_b32 s26, s26, s35')
    A('s_lshl_b32 s26, s26, 16')
    A('s_lshr_b32 s27, s27, s35')
    A('s_lshl_b32 s27, s27, 16')
    L2E_HI = f2u(LOG2E)
    L2E_LO = f2u(LOG2E - struct.unpack('<f', struct.pack('<I', L2E_HI))[0])
    LN2 = f2u(math.log(2.0))
    def exp_bf16(dst, src, t0, t1):
        A('v_mul_f32 v%d, 0x%x, v%d' % (t0, L2E_HI, src))
        A('v_mov_b32 v%d, 0x%x' % (t1, L2E_HI))
        A('v_fma_f32 v%d, v%d, v%d, -v%d' % (t1, src, t1, t0))
        A('v_fmac_f32 v%d, 0x%x, v%d' % (t1, L2E_LO, src))
        A('v_exp_f32 v%d, v%d' % (t0, t0))
        A('v_mul_f32 v%d, 0x%x, v%d' % (t1, LN2, t1))
        A('v_fma_f32 v%d, v%d, v%d, v%d' % (t0, t0, t1, t0))
        A('v_cvt_pk_bf16_f32 v%d, v%d, v%d' % (t0, t0, t0))
        A('v_lshlrev_b32 v%d, 16, v%d' % (dst, t0))
    A('v_mov_b32 v20, s26')
    exp_bf16(20, 20, 21, 22)
    stamp(A, 2)
    A('s_waitcnt vmcnt(0)')
    stamp(A, 3)
    for r in range(4):
        A('v_lshlrev_b32 v%d, 16, v%d' % (4 + r, 4 + r))
    exp_bf16(4, 4, 21, 22)
    A('v_mul_f32 v4, v4, v20')
    A('v_mul_f32 v4, 0x%x, v4' % f2u(-LOG2E))
    A('v_mul_f32 v5, v5, v20')
    A('v_mul_f32 v5, 0x%x, v5' % f2u(1.0 / (2 * math.pi)))
    A('v_mul_f32 v6, v6, v20')
    A('v_mul_f32 v7, v7, v20')
    A('v_add_f32 v6, v6, v6')
    A('v_add_f32 v7, v7, v7')
    A('ds_write_b128 v10, v[4:7]')
    A('v_mul_f32 v16, 0x45000000, v4')
    A('v_mul_f32 v17, 0x45000000, v5')
    A('v_exp_f32 v16, v16')
    A('v_fract_f32 v17, v17')
    A('v_cos_f32 v18, v17')
    A('v_sin_f32 v19, v17')
    A('s_nop 0')
    A('v_mul_f32 v18, v18, v6')
    A('v_fma_f32 v18, -v19, v7, v18')
    A('v_mul_f32 v22, v18, v16')
    for ctl in ('row_shr:1', 'row_shr:2', 'row_shr:4', 'row_shr:8'):
        A('s_nop 1')
        A('v_add_f32_dpp v22, v22, v22 %s row_mask:0xf bank_mask:0xf bound_ctrl:0' % ctl)
    A('s_nop 1')
    A('v_add_f32_dpp v22, v22, v22 row_bcast:15 row_mask:0xa bank_mask:0xf')
    A('s_nop 1')
    A('v_add_f32_dpp v22, v22, v22 row_bcast:31 row_mask:0xc bank_mask:0xf')
    V2048 = 22
    A('v_cmp_eq_u32 vcc, 0, v1')
    A('s_cmp_eq_u32 s12, 0')
    A('s_cselect_b32 s27, s27, 0')
    A('v_mov_b32 v21, s27')
    A('v_cndmask_b32 v21, 0, v21, vcc')
    VDSK = 21
    ACC = 24
    AF = 40
    BF = 56
    PR = [[72, 76, 80, 84], [88, 92, 96, 100]]
    WK = [104, 112, 120, 128]
    A('s_waitcnt lgkmcnt(0)')
    for q in range(4):
        A('ds_read_b128 %s, v11 offset:%d' % (vr(PR[0][q], 4), q * 16))
    def sq(re, im, t):
        if OMOD:
            return ['v_mul_f32 v%d, v%d, v%d' % (t, im, im), 'v_mul_f32_e64 v%d, v%d, v%d mul:2' % (im, re, im), 'v_fma_f32 v%d, v%d, v%d, -v%d' % (re, re, re, t)]
        return ['v_mul_f32 v%d, v%d, v%d' % (t, im, im), 'v_add_f32 v%d, v%d, v%d' % (t + 1, re, re),
                'v_fma_f32 v%d, v%d, v%d, -v%d' % (re, re, re, t), 'v_mul_f32 v%d, v%d, v%d' % (im, t + 1, im)]
    def cmul(dr, di, xr, xi, yr, yi, t):
        return ['v_mul_f32 v%d, v%d, v%d' % (t, xi, yi), 'v_mul_f32 v%d, v%d, v%d' % (t + 1, xi, yr),
                'v_fma_f32 v%d, v%d, v%d, v%d' % (di, xr, yi, t + 1), 'v_fma_f32 v%d, v%d, v%d, -v%d' % (dr, xr, yr, t)]
    def chain(m, pr, wk):
        Z, T, W, TW = wk, wk + 2, wk + 4, wk + 6
        t0, t1 = W, W + 1
        c = ['v_mul_f32 v%d, v%d, v%d' % (t0, pr, PB), 'v_mul_f32 v%d, v%d, v%d' % (t1, pr + 1, PB),
             'v_exp_f32 v%d, v%d' % (t0, t0), 'v_fract_f32 v%d, v%d' % (t1, t1),
             'v_cos_f32 v%d, v%d' % (Z, t1), 'v_sin_f32 v%d, v%d' % (Z + 1, t1),
             'v_mul_f32 v%d, v%d, v%d' % (Z, Z, t0), 'v_mul_f32 v%d, v%d, v%d' % (Z + 1, Z + 1, t0)]
        for o in range(4):
            c += ['v_cvt_pk_bf16_f32 v%d, v%d, v%d' % (BF + 4 * o + m, Z, Z + 1)] + sq(Z, Z + 1, T)
        c += cmul(W, W + 1, Z, Z + 1, pr + 2, pr + 3, TW)
        for o in range(4):
            c += ['v_cvt_pk_bf16_f32 v%d, v%d, -v%d' % (AF + 4 * o + m, W, W + 1)]
            if o < 3: c += cmul(W, W + 1, W, W + 1, Z, Z + 1, TW)
            if o < 2: c += sq(Z, Z + 1, T)
        return c
    stream = []
    for st in range(4):
        pb = st & 1
        stream.append('s_waitcnt lgkmcnt(0)')
        if st + 1 < 4:
            for q in range(4):
                stream.append('ds_read_b128 %s, v11 offset:%d' % (vr(PR[pb ^ 1][q], 4), (st + 1) * 256 + q * 16))
        ch = [chain(m, PR[pb][m], WK[m]) for m in range(4)]
        for i in range(len(ch[0])):
            for m in range(4): stream.append(ch[m][i])
        stream.append('s_nop 1')
        for o in range(4):
            c = '0' if st == 0 else vr(ACC + 4 * o, 4)
            stream.append('v_mfma_f32_16x16x32_bf16 %s, %s, %s, %s' % (vr(ACC + 4 * o, 4), vr(AF + 4 * o, 4), vr(BF + 4 * o, 4), c))
    NB = KG_NB
    per = len(stream) / NB
    nxt = 0
    for i, l in enumerate(stream):
        if nxt < NB and i >= nxt * per and not (i > 0 and stream[i - 1].startswith('s_nop')) and not l.startswith('v_mfma'):
            A('s_barrier'); nxt += 1
        if not (NOKG and l.startswith('v_') ): A(l)
    assert nxt == NB
    stamp(A, 4)
    A('v_mov_b32 v61, s%d' % SKC)
    A('v_mov_b32 v62, s13')
    A.nop(6)
    A('v_add_f32 v%d, v%d, v%d' % (ACC, ACC, VDSK))
    for r in range(4):
        A('ds_write_b32 v%d, v%d' % (CA + r, ACC + r))
    A('s_mov_b32 exec_lo, 0')
    for r in range(4, 16):
        A('ds_write_b32 v%d, v%d offset:%d' % (CA + (r & 3), ACC + r, 512 * (r >> 2)))
    A('s_brev_b32 exec_hi, 1')
    A('ds_write_b32 v61, v%d offset:%d' % (V2048, 4 * 1409))
    A('s_mov_b64 exec, -1')
    AD = 64; F = 40; F2 = 104
    for e in range(16):
        A('v_add_u32_sdwa v%d, v%d, v62 dst_sel:DWORD dst_unused:UNUSED_PAD src0_sel:WORD_%d src1_sel:DWORD' % (AD + e, GP + e // 2, e & 1))
    A('s_waitcnt lgkmcnt(0)')
    A('s_barrier')
    stamp(A, 5)
    for e in range(16):
        A('ds_read_b32 v%d, v%d' % (F + e, AD + e))
        A('ds_read_b32 v%d, v%d offset:%d' % (F2 + e, AD + e, KG_TS))
    A('v_lshlrev_b32 v19, 1, v14')
    A('s_lshl_b32 s35, s29, 12')
    A('s_add_u32 s35, s35, %d' % WS_KR)
    A('s_waitcnt lgkmcnt(0)')
    for e in range(16):
        A('v_add_f32 v%d, v%d, v%d' % (F + e, F + e, F2 + e))
    for i in range(8):
        A('v_cvt_pk_bf16_f32 v%d, v%d, v%d' % (88 + i, F + 2 * i, F + 2 * i + 1))
    A('buffer_store_dwordx4 v[88:91], v19, s[20:23], s35 offen' + ST1)
    A('buffer_store_dwordx4 v[92:95], v19, s[20:23], s35 offen offset:1024' + ST1)
    lend = A.newlabel('kg_end')
    A('s_cmp_lg_u32 s33, 3')
    A('s_cbranch_scc1 %s' % lend)
    A('v_lshrrev_b32 v2, 5, v1')
    A('v_lshlrev_b32 v2, 3, v2')
    A('v_bfe_u32 v3, v1, 2, 2')
    A('v_add_u32 v2, v2, v3')
    A('v_lshlrev_b32 v2, 6, v2')
    A('v_bfe_u32 v3, v1, 4, 1')
    A('v_lshlrev_b32 v3, 1, v3')
    A('v_bfe_u32 v4, v1, 1, 1')
    A('v_add_u32 v3, v3, v4')
    A('v_and_b32 v4, 1, v1')
    A('v_lshlrev_b32 v4, 2, v4')
    A('v_add_u32 v3, v3, v4')
    A('v_lshlrev_b32 v3, 3, v3')
    A('v_add_u32 v2, v2, v3')
    A('v_add_u32 v2, %d, v2' % KG_WO)
    A('ds_read_b64_tr_b16 v[4:5], v2')
    A('ds_read_b64_tr_b16 v[6:7], v2 offset:256')
    A('ds_read_b64_tr_b16 v[8:9], v2 offset:1024')
    A('ds_read_b64_tr_b16 v[10:11], v2 offset:1280')
    A('s_and_b32 s31, s24, 15')
    A('s_lshr_b32 s32, s24, 4')
    A('s_lshl_b32 s31, s31, 5')
    A('s_lshl_b32 s32, s32, 1')
    A('s_add_u32 s31, s31, s32')
    A('s_lshl_b32 s31, s31, 10')
    A('s_add_u32 s31, s31, %d' % WS_WOF)
    A('v_lshlrev_b32 v3, 4, v1')
    A('s_waitcnt lgkmcnt(0)')
    A('buffer_store_dwordx4 v[4:7], v3, s[20:23], s31 offen' + ST1)
    A('buffer_store_dwordx4 v[8:11], v3, s[20:23], s31 offen offset:1024' + ST1)
    A.label(lend)
    for _ in range(16 - (KG_NB + 1)):
        A('s_barrier')
    stamp(A, 6)
    if STAMP: A('s_waitcnt vmcnt(0)')
    stamp(A, 7); stamp(A, 8, True)
    if STAMP: A('s_add_u32 s33, s33, 8')
    stamp_flush(A, 9, 0, 33, 20)
    A('s_endpgm')

def k1(A):
    A('.p2align 8')
    A('.type k1_kernel,@function')
    A.label('k1_kernel')
    A('s_cmp_ge_u32 s2, 256')
    A('s_cbranch_scc1 k1_exit')
    stamp(A, 0, True); stamp(A, 1)
    A('s_load_dwordx4 s[4:7], s[0:1], %d' % KA_X)
    A('s_load_dwordx2 s[8:9], s[0:1], %d' % KA_WS)
    A('v_lshrrev_b32 v2, 6, v0')
    A('v_and_b32 v1, 63, v0')
    A('s_and_b32 s24, s2, 7')
    A('v_readfirstlane_b32 s33, v2')
    A('s_lshr_b32 s25, s2, 3')
    A('s_and_b32 s26, s24, 3')
    A('s_lshl_b32 s26, s26, 3')
    A('s_and_b32 s27, s25, 7')
    A('s_add_u32 s26, s26, s27')
    A('s_lshr_b32 s27, s24, 2')
    A('s_lshl_b32 s27, s27, 2')
    A('s_lshr_b32 s28, s25, 3')
    A('s_add_u32 s27, s27, s28')
    A('s_cmp_ge_u32 s33, 8')
    A('s_cbranch_scc1 k1_kgen')
    A('s_cmp_lt_u32 s33, 4')
    A('s_cbranch_scc1 k1_comp')
    k1_loader(A)
    k1_comp(A)
    k1_kgen(A)
    A.label('k1_exit')
    A('s_endpgm')

L_K = 0
L_V = 65536
VST = 1120
L_KR = L_V + 64 * VST
L_U = L_KR + 4 * 4160
K2_LDS = L_U + 2 * 4608
K2_B2 = 12
K2_B3 = 32
NOCONV = False
OMOD = True
KG_NB = 15
NOCOMP = False
NOKG = False
STAMP2 = False
STAMP2B = False
NOKGEN = False
NOGEMM = False

def k2_attn(A):
    Q = 4
    KB = [8, 12]; V0 = [16, 20]; V1 = [24, 28]; P = 32; O = 40; S = [56, 72]; NM = 88
    VK, VA, VB = 2, 3, 105
    A.label('k2_attn')
    stamp(A, 0, True); stamp(A, 1)
    A('s_lshl_b32 s28, s25, 6')
    A('s_lshl_b32 s29, s26, 3')
    A('s_add_u32 s29, s29, s24')
    A('s_add_u32 s32, s28, s29')
    A('s_lshl_b32 s32, s32, 10')
    A('v_lshlrev_b32 v104, 4, v1')
    A('s_lshl_b32 s35, s24, 10')
    A('s_mul_i32 s36, s24, %d' % VST)
    for r in range(2):
        A('s_add_u32 s33, s24, %d' % (8 * r))
        A('s_add_u32 s33, s33, s28')
        A('s_lshl_b32 s33, s33, 10')
        A('s_add_u32 s34, s33, %d' % WS_VF)
        A('s_add_u32 s33, s33, %d' % WS_KF)
        A('s_add_u32 m0, s35, %d' % (L_K + r * 8192))
        A('s_nop 0')
        A('buffer_load_dwordx4 v104, s[12:15], s33 offen lds')
        if r == 0:
            A('buffer_load_dwordx4 v[4:7], v104, s[12:15], s32 offen')
        A('s_add_u32 m0, s36, %d' % (L_V + r * 8 * VST))
        A('s_nop 0')
        A('buffer_load_dwordx4 v104, s[12:15], s34 offen lds')
    A('v_and_b32 v106, 31, v1')
    A('v_lshrrev_b32 v107, 5, v1')
    A('v_lshlrev_b32 v107, 8, v107')
    A('v_lshl_add_u32 v107, v106, 4, v107')
    A('v_mov_b32 v108, 1040')
    A('v_mov_b32 v109, 1104')
    A('v_subrev_u32 v110, 20, v106')
    A('v_cmp_gt_u32 vcc, 8, v110')
    A('s_nop 1')
    A('v_cndmask_b32 v108, v108, v109, vcc')
    A('v_cmp_eq_u32 vcc, 16, v106')
    A('v_mov_b32 v109, 1024')
    A('s_nop 0')
    A('v_cndmask_b32 v108, v108, v109, vcc')
    A('v_cmp_eq_u32 vcc, 20, v106')
    A('v_mov_b32 v109, 1088')
    A('s_nop 0')
    A('v_cndmask_b32 v108, v108, v109, vcc')
    A('v_add_u32 v109, 512, v107')
    A('v_cmp_gt_u32 vcc, 16, v106')
    A('s_nop 1')
    A('v_cndmask_b32 v110, v108, v107, vcc')
    A('v_cndmask_b32 v111, v108, v109, vcc')
    A('v_add_u32 v110, %d, v110' % L_V)
    A('v_add_u32 v111, %d, v111' % L_V)
    A('s_mov_b32 s42, 0')
    stamp(A, 2)
    A('s_waitcnt vmcnt(0)')
    A('s_barrier')
    stamp(A, 3)

    def prologue(exact):
        A('v_mov_b32 v%d, v104' % VK)
        A('v_mov_b32 v%d, v110' % VA)
        A('v_mov_b32 v%d, v111' % VB)
        A('ds_read_b128 %s, v%d' % (vr(KB[0], 4), VK))
        A('ds_read_b128 %s, v%d offset:1024' % (vr(KB[1], 4), VK))
        A('ds_read_b128 %s, v%d' % (vr(V0[0], 4), VA))
        A('ds_read_b128 %s, v%d' % (vr(V1[0], 4), VB))
        for r in range(O, O + 16):
            A('v_mov_b32 v%d, 0' % r)
        for r in range(P, P + 8):
            A('v_mov_b32 v%d, 0' % r)
        for r in range(4):
            A('v_mov_b32 v%d, 0' % (V1[1] + r))
        A('s_waitcnt lgkmcnt(3)')
        A('v_mfma_f32_32x32x16_bf16 %s, %s, %s, %s' % (vr(S[0], 16), vr(KB[0], 4), vr(Q, 4), vr(NM, 16) if exact else '0'))
        A.nop(12)
    def tile(u, koff, voff, exact, do_qk=True, do_k=True, do_v=True):
        p = u & 1
        cur = S[p]; nxt = S[p ^ 1]
        def e(i): A('v_exp_f32 v%d, v%d' % (cur + i, cur + i))
        def c(i): A('v_cvt_pk_bf16_f32 v%d, v%d, v%d' % (P + i, cur + 2 * i, cur + 2 * i + 1))
        A('s_waitcnt lgkmcnt(0)')
        e(0); e(1)
        A('v_mfma_f32_32x32x16_bf16 %s, %s, %s, %s' % (vr(O, 16), vr(V1[p ^ 1], 4), vr(P + 4, 4), vr(O, 16)))
        if do_v: A('ds_read_b128 %s, v%d offset:%d' % (vr(V1[p ^ 1], 4), VB, voff))
        for i in range(2, 7): e(i)
        if do_qk: A('v_mfma_f32_32x32x16_bf16 %s, %s, %s, %s' % (vr(nxt, 16), vr(KB[p ^ 1], 4), vr(Q, 4), vr(NM, 16) if exact else '0'))
        if do_k: A('ds_read_b128 %s, v%d offset:%d' % (vr(KB[p], 4), VK, koff))
        e(7); e(8)
        for i in range(4): c(i)
        for i in range(9, 12): e(i)
        A('v_mfma_f32_32x32x16_bf16 %s, %s, %s, %s' % (vr(O, 16), vr(V0[p], 4), vr(P, 4), vr(O, 16)))
        if do_v: A('ds_read_b128 %s, v%d offset:%d' % (vr(V0[p ^ 1], 4), VA, voff))
        for i in range(12, 16): e(i)
        for i in range(4, 8): c(i)
    def final_pv():
        A('s_waitcnt lgkmcnt(0)')
        A('s_nop 0')
        A('v_mfma_f32_32x32x16_bf16 %s, %s, %s, %s' % (vr(O, 16), vr(V1[1], 4), vr(P + 4, 4), vr(O, 16)))
        A.nop(12)
    prologue(False)
    vbase = 0
    for t in range(64):
        if t == K2_B2:
            stamp(A, 6); A('s_barrier'); stamp(A, 7)
        if t == K2_B3:
            stamp(A, 11); A('s_barrier'); stamp(A, 12)
        if t == 32:
            A('v_add_u32 v%d, %d, v%d' % (VA, 32 * VST, VA))
            A('v_add_u32 v%d, %d, v%d' % (VB, 32 * VST, VB))
            vbase = 32
        tile(t, (t + 2) * 1024, (t + 1 - vbase) * VST, False, do_qk=(t < 63), do_k=(t < 62), do_v=(t < 63))
    final_pv()
    lfin = 'k2_fin'
    A('v_mov_b32 v105, 0x1f800000')
    A('v_mov_b32 v106, 0x5f800000')
    A('v_cmp_le_f32 vcc, v105, v%d' % (O + 8))
    A('v_cmp_le_f32 s[36:37], v%d, v106' % (O + 8))
    A('v_mov_b32 v105, 0x7f800000')
    A('s_nop 0')
    A('s_and_b64 vcc, vcc, s[36:37]')
    for r in range(8):
        A('v_cmp_lt_f32 s[36:37], abs(v%d), v105' % (O + r))
        A('s_nop 1')
        A('s_and_b64 vcc, vcc, s[36:37]')
    A('s_not_b64 s[36:37], vcc')
    A('s_cmp_eq_u64 s[36:37], 0')
    A('s_cbranch_scc0 k2_fallback')
    A.label(lfin)
    A('v_rcp_f32 v105, v%d' % (O + 8))
    A('s_nop 0')
    for r in range(8):
        A('v_mul_f32 v%d, v%d, v105' % (O + r, O + r))
    for i in range(4):
        A('v_cvt_pk_bf16_f32 v%d, v%d, v%d' % (108 + i, O + 2 * i, O + 2 * i + 1))
    A('s_lshl_b32 s32, s29, 5')
    A('s_add_u32 s32, s32, s25')
    A('s_lshl_b32 s32, s32, 10')
    A('s_add_u32 s32, s32, %d' % WS_OF)
    stamp(A, 8)
    A('buffer_store_dwordx4 v[108:111], v104, s[12:15], s32 offen' + ST2)
    if STAMP: A('s_waitcnt vmcnt(0)')
    stamp(A, 9); stamp(A, 10, True)
    stamp_flush(A, 13, 1, 24, 12)
    A('s_endpgm')
    A.label('k2_fallback')
    A('v_mov_b32 v105, 0xff800000')
    A('v_mov_b32 v%d, v104' % VK)
    A('s_mov_b32 s38, 0')
    A.label('k2_maxloop')
    A('ds_read_b128 %s, v%d' % (vr(KB[0], 4), VK))
    A('s_waitcnt lgkmcnt(0)')
    A('v_mfma_f32_32x32x16_bf16 %s, %s, %s, 0' % (vr(S[0], 16), vr(KB[0], 4), vr(Q, 4)))
    A.nop(14)
    for i in range(8):
        A('v_max3_f32 v105, v105, v%d, v%d' % (S[0] + 2 * i, S[0] + 2 * i + 1))
    A('v_add_u32 v%d, 1024, v%d' % (VK, VK))
    A('s_add_u32 s38, s38, 1')
    A('s_cmp_lt_u32 s38, 64')
    A('s_cbranch_scc1 k2_maxloop')
    A('v_mov_b32 v106, v105')
    A.nop(2)
    A('v_permlane32_swap_b32 v105, v106')
    A.nop(2)
    A('v_max_f32 v105, v105, v106')
    for r in range(NM, NM + 16):
        A('v_sub_f32 v%d, 0, v105' % r)
    prologue(True)
    A('s_mov_b32 s38, 0')
    A.label('k2_exloop')
    tile(0, 2048, VST, True)
    tile(1, 3072, 2 * VST, True)
    A('v_add_u32 v%d, 2048, v%d' % (VK, VK))
    A('v_add_u32 v%d, %d, v%d' % (VA, 2 * VST, VA))
    A('v_add_u32 v%d, %d, v%d' % (VB, 2 * VST, VB))
    A('s_add_u32 s38, s38, 1')
    A('s_cmp_lt_u32 s38, 32')
    A('s_cbranch_scc1 k2_exloop')
    final_pv()
    A('s_branch k2_fin')

def k2_conv(A):
    A.label('k2_conv')
    stamp(A, 0, True); stamp(A, 1)
    A('s_setprio 2')
    A('s_sub_u32 s28, s24, 8')
    A('v_lshlrev_b32 v2, 4, v1')
    A('s_mul_i32 s31, s28, 4160')
    A('s_add_u32 s31, s31, %d' % L_KR)
    A('v_mov_b32 v4, 0')
    A('v_mov_b32 v5, 0')
    A('v_lshlrev_b32 v6, 2, v1')
    A('v_add_u32 v6, s31, v6')
    A('s_mov_b32 exec_lo, 0xffff')
    A('s_mov_b32 exec_hi, 0')
    A('ds_write_b32 v6, v4 offset:4096')
    A('s_mov_b64 exec, -1')
    lz = A.newlabel('cv_nz')
    A('s_cmp_ge_u32 s28, 2')
    A('s_cbranch_scc1 %s' % lz)
    A('s_mul_i32 s33, s28, 4608')
    A('v_lshlrev_b32 v6, 3, v1')
    A('v_add_u32 v6, s33, v6')
    A('v_add_u32 v6, %d, v6' % L_U)
    A('ds_write_b64 v6, v[4:5]')
    A.label(lz)
    A('v_mul_u32_u24 v6, %d, v1' % VST)
    A('s_lshr_b32 s33, s28, 1')
    A('s_lshl_b32 s33, s33, 6')
    A('s_and_b32 s34, s28, 1')
    A('s_lshl_b32 s35, s34, 4')
    A('s_add_u32 s33, s33, s35')
    A('s_add_u32 s33, s33, %d' % (L_V + 1024))
    A('v_add_u32 v6, s33, v6')
    A('s_cmp_eq_u32 s34, 0')
    A('s_cselect_b32 s33, 0x3f803f80, 0')
    for r in range(8, 12):
        A('v_mov_b32 v%d, s33' % r)
    A('ds_write_b128 v6, v[8:11]')
    A('s_add_u32 s33, s28, 16')
    A('s_lshl_b32 s36, s25, 16')
    A('s_add_u32 s35, s28, 16')
    A('s_mul_i32 s39, s35, %d' % VST)
    A('s_lshl_b32 s35, s35, 10')
    A('s_waitcnt lgkmcnt(0)')
    stamp(A, 2)
    A('s_barrier')
    stamp(A, 3)
    for i in range(12):
        A('s_and_b32 s34, s33, 63')
        A('s_lshl_b32 s34, s34, 10')
        A('s_add_u32 s34, s34, s36')
        A('s_add_u32 s37, s34, %d' % WS_KF)
        A('s_add_u32 m0, s35, %d' % (L_K + i * 4096))
        A('s_add_u32 s34, s34, %d' % WS_VF)
        A('buffer_load_dwordx4 v2, s[12:15], s37 offen lds')
        A('s_add_u32 m0, s39, %d' % (L_V + i * 4 * VST))
        A('s_add_u32 s33, s33, 4')
        A('buffer_load_dwordx4 v2, s[12:15], s34 offen lds')
    lk = A.newlabel('cv_nk')
    A('s_bitcmp1_b32 s28, 0')
    A('s_cbranch_scc1 %s' % lk)
    A('s_lshl_b32 s29, s27, 13')
    A('s_lshl_b32 s30, s28, 11')
    A('s_add_u32 s29, s29, s30')
    A('s_add_u32 s29, s29, %d' % WS_KR)
    for j in range(4):
        A('s_add_u32 m0, s31, %d' % (j * 1024))
        A('s_nop 0')
        A('buffer_load_dwordx4 v2, s[12:15], s29 offen lds')
        A('s_add_u32 s29, s29, 1024')
    A.label(lk)
    A('s_waitcnt vmcnt(0) lgkmcnt(0)')
    A('s_barrier')
    stamp(A, 4)
    A('v_lshlrev_b32 v3, 11, v1')
    A('s_lshl_b32 s32, s28, 19')
    A('s_lshl_b32 s33, s27, 2')
    A('s_add_u32 s32, s32, s33')
    for q in range(4):
        A('buffer_load_dword v%d, v3, s[16:19], s32 offen' % (8 + 2 * q))
        A('buffer_load_dword v%d, v3, s[16:19], s32 offen offset:1024' % (9 + 2 * q))
        A('s_add_u32 s32, s32, %d' % (128 * 1024))
    lc = A.newlabel('cv_nc')
    A('s_bitcmp1_b32 s28, 0')
    A('s_cbranch_scc0 %s' % lc)
    A('v_add_u32 v6, s31, v2')
    for j in range(4):
        A('ds_read_b128 %s, v6 offset:%d' % (vr(16 + 4 * j, 4), 65536 - 4160 + 2 + j * 1024) if False else 'v_subrev_u32 v7, %d, v6' % (4160 - 2))
        break
    for j in range(4):
        A('ds_read_b128 %s, v7 offset:%d' % (vr(16 + 4 * j, 4), j * 1024))
    A('s_waitcnt lgkmcnt(0)')
    for j in range(4):
        A('ds_write_b128 v6, %s offset:%d' % (vr(16 + 4 * j, 4), j * 1024))
    A.label(lc)
    A('s_waitcnt vmcnt(0)')
    stamp(A, 5)
    A('s_mov_b32 s34, 0x05040100')
    A('s_mov_b32 s35, 0x07060302')
    A('v_lshlrev_b32 v6, 2, v1')
    A('s_lshl_b32 s33, s28, 10')
    A('s_add_u32 s33, s33, %d' % (L_U + 512))
    A('v_add_u32 v6, s33, v6')
    for q in range(4):
        A('v_perm_b32 v%d, v%d, v%d, s34' % (16 + 2 * q, 9 + 2 * q, 8 + 2 * q))
        A('v_perm_b32 v%d, v%d, v%d, s35' % (17 + 2 * q, 9 + 2 * q, 8 + 2 * q))
    for q in range(4):
        A('ds_write_b32 v6, v%d offset:%d' % (16 + 2 * q, 256 * q))
        A('ds_write_b32 v6, v%d offset:%d' % (17 + 2 * q, 256 * q + 4608))
    A('v_and_b32 v7, 15, v1')
    A('v_lshrrev_b32 v8, 4, v1')
    A('v_and_b32 v9, 1, v1')
    A('v_lshlrev_b32 v10, 3, v8')
    A('v_add_u32 v10, v10, v7')
    A('v_sub_u32 v10, v9, v10')
    A('v_add_u32 v10, 2054, v10')
    A('v_lshlrev_b32 v10, 1, v10')
    A('v_xor_b32 v9, 1, v9')
    A('v_mul_u32_u24 v9, 4160, v9')
    A('v_add_u32 v10, v10, v9')
    A('v_add_u32 v10, %d, v10' % (L_KR - 448))
    A('v_add_u32 v11, 8320, v10')
    A('v_lshlrev_b32 v12, 5, v7')
    A('v_lshlrev_b32 v13, 4, v8')
    A('v_sub_u32 v12, v12, v13')
    A('v_add_u32 v12, %d, v12' % (L_U + 528 - 448))
    A('s_lshl_b32 s33, s28, 9')
    A('v_add_u32 v13, s33, v12')
    A('s_sub_u32 s36, 7, s28')
    A('s_lshl_b32 s33, s36, 9')
    A('v_add_u32 v12, s33, v12')
    VKA, VKB_, VUA, VUB = 10, 11, 13, 12
    ACC = 16
    for r in range(ACC, ACC + 16):
        A('v_mov_b32 v%d, 0' % r)
    A('s_waitcnt lgkmcnt(0)')
    stamp(A, 6)
    A('s_barrier')
    stamp(A, 7)
    KF = [32, 40]
    UF = [48, 64]
    def kreads(k, buf):
        o = (7 - k) * 16
        for ci, va in ((0, VKA), (1, VKB_)):
            A('ds_read2_b32 %s, v%d offset0:%d offset1:%d' % (vr(KF[buf] + 4 * ci, 2), va, o, o + 1))
            A('ds_read2_b32 %s, v%d offset0:%d offset1:%d' % (vr(KF[buf] + 4 * ci + 2, 2), va, o + 2, o + 3))
    def ureads(k, buf, both):
        o = (7 - k) * 64
        if both:
            A('ds_read_b128 %s, v%d offset:%d' % (vr(UF[buf], 4), VUA, o))
            A('ds_read_b128 %s, v%d offset:%d' % (vr(UF[buf] + 4, 4), VUA, o + 4608))
        A('ds_read_b128 %s, v%d offset:%d' % (vr(UF[buf] + 8, 4), VUB, o))
        A('ds_read_b128 %s, v%d offset:%d' % (vr(UF[buf] + 12, 4), VUB, o + 4608))
    def mf(buf, both):
        lst = [(0, 0), (1, 1), (2, 0), (3, 1)] if both else [(2, 0), (3, 1)]
        for (ai, ci) in lst:
            acc = vr(ACC + 4 * ai, 4)
            A('v_mfma_f32_16x16x32_bf16 %s, %s, %s, %s' % (acc, vr(UF[buf] + 4 * ai, 4), vr(KF[buf] + 4 * ci, 4), acc))
    def block(both):
        nu = 4 if both else 2
        kreads(0, 0); ureads(0, 0, both)
        for k in range(8):
            buf = k & 1
            if k < 7:
                kreads(k + 1, buf ^ 1)
                A('s_waitcnt lgkmcnt(4)')
                ureads(k + 1, buf ^ 1, both)
            else:
                A('s_waitcnt lgkmcnt(0)')
            mf(buf, both)
        for v in (VKA, VKB_, VUB) + ((VUA,) if both else ()):
            A('v_subrev_u32 v%d, 512, v%d' % (v, v))
    if NOCONV:
        A('s_endpgm')
    A('s_mov_b32 s38, 0')
    A.label('cv_loop1')
    block(True)
    A('s_add_u32 s38, s38, 1')
    A('s_cmp_le_u32 s38, s28')
    A('s_cbranch_scc1 cv_loop1')
    A.label('cv_loop2')
    block(False)
    A('s_add_u32 s38, s38, 1')
    A('s_cmp_le_u32 s38, s36')
    A('s_cbranch_scc1 cv_loop2')
    stamp(A, 8)
    A.nop(8)
    A('v_lshlrev_b32 v8, 6, v8')
    A('v_add_u32 v8, v8, v7')
    A('v_lshlrev_b32 v8, 11, v8')
    A('s_lshl_b32 s33, s27, 2')
    A('s_add_u32 s33, s33, 1024')
    for (T, a) in ((28, 0), (36, 2)):
        A('s_lshl_b32 s34, s%d, 19' % T)
        A('s_add_u32 s34, s34, s33')
        for r in range(4):
            d = 80 + 4 * (a // 2) + r
            A('v_cvt_pk_bf16_f32 v%d, v%d, v%d' % (d, ACC + 4 * a + r, ACC + 4 * (a + 1) + r))
            A(('buffer_store_dword v%d, v8, s[20:23], s34 offen' % d) + ST2C)
            A('s_add_u32 s34, s34, 32768')
    if STAMP: A('s_waitcnt vmcnt(0)')
    stamp(A, 9); stamp(A, 10, True)
    stamp_flush(A, 11, 1, 24, 12)
    A('s_endpgm')

def k2(A):
    A('.p2align 8')
    A('.type k2_kernel,@function')
    A.label('k2_kernel')
    A('s_cmp_ge_u32 s2, 256')
    A('s_cbranch_scc1 k2_exit')
    A('s_load_dwordx2 s[4:5], s[0:1], %d' % KA_WS)
    A('s_load_dwordx2 s[6:7], s[0:1], %d' % KA_U)
    A('s_load_dwordx2 s[8:9], s[0:1], %d' % KA_OUT)
    A('v_lshrrev_b32 v2, 6, v0')
    A('v_and_b32 v1, 63, v0')
    A('s_and_b32 s28, s2, 7')
    A('v_readfirstlane_b32 s24, v2')
    A('s_lshr_b32 s29, s2, 3')
    A('s_lshl_b32 s25, s28, 2')
    A('s_and_b32 s30, s29, 3')
    A('s_add_u32 s25, s25, s30')
    A('s_lshr_b32 s26, s29, 2')
    A('s_lshl_b32 s27, s28, 5')
    A('s_add_u32 s27, s27, s29')
    A('s_waitcnt lgkmcnt(0)')
    srd(A, 12, 4, WS_SIZE)
    srd(A, 16, 6, 2048 * 1024)
    srd(A, 20, 8, 2048 * 2048)
    A('s_cmp_ge_u32 s24, 8')
    A('s_cbranch_scc1 k2_conv')
    k2_attn(A)
    k2_conv(A)
    A.label('k2_exit')
    A('s_endpgm')

def k3(A):
    A('.p2align 8')
    A('.type k3_kernel,@function')
    A.label('k3_kernel')
    A('s_cmp_ge_u32 s2, 256')
    A('s_cbranch_scc1 k3_exit')
    stamp(A, 0, True); stamp(A, 1)
    A('s_load_dwordx2 s[4:5], s[0:1], %d' % KA_WS)
    A('s_load_dwordx2 s[8:9], s[0:1], %d' % KA_OUT)
    A('v_lshrrev_b32 v2, 6, v0')
    A('v_and_b32 v1, 63, v0')
    A('s_and_b32 s28, s2, 7')
    A('v_readfirstlane_b32 s24, v2')
    A('s_lshr_b32 s29, s2, 3')
    A('s_lshl_b32 s25, s28, 2')
    A('s_and_b32 s30, s29, 3')
    A('s_add_u32 s25, s25, s30')
    A('s_lshr_b32 s26, s29, 2')
    A('v_lshlrev_b32 v2, 4, v1')
    A('s_waitcnt lgkmcnt(0)')
    srd(A, 12, 4, WS_SIZE)
    srd(A, 20, 8, 2048 * 2048)
    A('s_cmp_lt_u32 s24, 4')
    A('s_cbranch_scc1 k3_comp')
    A('s_sub_u32 s31, s24, 4')
    A('s_and_b32 s32, s31, 1')
    A('s_lshl_b32 s33, s25, 1')
    A('s_add_u32 s33, s33, s32')
    A('s_lshl_b32 s33, s33, 15')
    A('s_add_u32 s33, s33, %d' % WS_OF)
    A('s_lshl_b32 s34, s26, 1')
    A('s_add_u32 s34, s34, s32')
    A('s_lshl_b32 s34, s34, 15')
    A('s_add_u32 s34, s34, %d' % WS_WOF)
    A('s_cmp_ge_u32 s31, 2')
    A('s_cselect_b32 s33, s34, s33')
    A('s_lshl_b32 s35, s31, 15')
    A('s_lshl_b32 s36, s25, 1')
    A('s_add_u32 s36, s36, s26')
    def grp(g):
        A('s_add_u32 s37, s36, %d' % g)
        A('s_and_b32 s37, s37, 7')
        A('s_lshl_b32 s37, s37, 12')
        A('s_add_u32 s37, s37, s33')
        for j in range(4):
            A('s_add_u32 m0, s35, %d' % ((4 * g + j) * 1024))
            A('s_nop 0')
            A('buffer_load_dwordx4 v2, s[12:15], s37 offen lds')
            if j < 3: A('s_add_u32 s37, s37, 1024')
    grp(0); grp(1); grp(2)
    stamp(A, 2)
    for g in range(8):
        issued = min(g + 3, 8)
        A('s_waitcnt vmcnt(%d)' % (4 * (issued - g - 1)))
        A('s_barrier')
        if g == 0: stamp(A, 3)
        if g + 3 < 8:
            grp(g + 3)
    stamp(A, 4); stamp(A, 5); stamp(A, 6); stamp(A, 7); stamp(A, 8); stamp(A, 9, True)
    stamp_flush(A, 10, 2, 24, 12)
    A('s_endpgm')
    A.label('k3_comp')
    A('s_lshr_b32 s31, s24, 1')
    A('s_and_b32 s32, s24, 1')
    A('s_lshl_b32 s33, s31, 15')
    A('v_add_u32 v3, s33, v2')
    A('s_lshl_b32 s33, s32, 15')
    A('s_add_u32 s33, s33, 65536')
    A('v_add_u32 v4, s33, v2')
    ACC = 16
    FB = [32, 64]
    stamp(A, 2)
    for g in range(9):
        A('s_waitcnt lgkmcnt(0)')
        if g < 8:
            A('s_barrier')
            if g == 0: stamp(A, 3)
            b = FB[g & 1]
            for j in range(4):
                A('ds_read_b128 %s, v3 offset:%d' % (vr(b + 8 * j, 4), (4 * g + j) * 1024))
                A('ds_read_b128 %s, v4 offset:%d' % (vr(b + 8 * j + 4, 4), (4 * g + j) * 1024))
        if g > 0:
            b = FB[(g - 1) & 1]
            for j in range(4):
                c = '0' if (g == 1 and j == 0) else vr(ACC, 16)
                A('v_mfma_f32_32x32x16_bf16 %s, %s, %s, %s' % (vr(ACC, 16), vr(b + 8 * j + 4, 4), vr(b + 8 * j, 4), c))
    stamp(A, 4)
    A('s_lshl_b32 s37, s31, 5')
    A('s_lshl_b32 s38, s25, 6')
    A('s_add_u32 s37, s37, s38')
    A('s_lshl_b32 s37, s37, 11')
    A('s_lshl_b32 s38, s32, 6')
    A('s_lshl_b32 s39, s26, 7')
    A('s_add_u32 s38, s38, s39')
    A('s_add_u32 s37, s37, s38')
    A('v_and_b32 v5, 31, v1')
    A('v_lshlrev_b32 v5, 11, v5')
    A('v_lshrrev_b32 v6, 5, v1')
    A('v_lshlrev_b32 v6, 5, v6')
    A('v_add_u32 v5, v5, v6')
    A.nop(8)
    for i in range(8):
        A('v_cvt_pk_bf16_f32 v%d, v%d, v%d' % (96 + i, ACC + 2 * i, ACC + 2 * i + 1))
    stamp(A, 5); stamp(A, 6)
    A('buffer_store_dwordx4 v[96:99], v5, s[20:23], s37 offen' + ST3)
    A('buffer_store_dwordx4 v[100:103], v5, s[20:23], s37 offen offset:16' + ST3)
    stamp(A, 7)
    if STAMP: A('s_waitcnt vmcnt(0)')
    stamp(A, 8); stamp(A, 9, True)
    stamp_flush(A, 10, 2, 24, 12)
    A.label('k3_exit')
    A('s_endpgm')

VGPRS = {'k1': 160, 'k2': 112, 'k3': 104}
```

```python
import sys, math, struct
from asmlib import *

NAME = 'concat_heads__mha_block__ssm_conv_s4d__prompt'
WS_QF = 0
WS_KF = 2 << 20
WS_VF = 4 << 20
WS_OF = 6 << 20
WS_WOF = 8 << 20
WS_KR = 9 << 20
WS_SIZE = 256 << 20
WS_CNT = 12 << 20
KA_X, KA_WQKV, KA_WO, KA_U, KA_LAR, KA_AI, KA_CR, KA_CI, KA_LDT, KA_DSK, KA_OUT, KA_DBG, KA_WS = [8 * i for i in range(13)]

STAMP = False
ST1 = ''
ST2 = ''
ST2C = ''
ST3 = ''
WS_STAMP = 64 << 20
def stamp(A, i, real=False):
    if not STAMP: return
    A('s_memtime s[%d:%d]' % (64 + 2 * i, 65 + 2 * i)) if not real else A('s_memrealtime s[%d:%d]' % (64 + 2 * i, 65 + 2 * i))
    A('s_waitcnt lgkmcnt(0)')
def stamp_flush(A, n, kidx, wave_sgpr, srd_base):
    if not STAMP: return
    A('s_waitcnt vmcnt(0) lgkmcnt(0)')
    A('s_lshl_b32 s62, s2, 4')
    A('s_add_u32 s62, s62, s%d' % wave_sgpr)
    A('s_lshl_b32 s62, s62, 6')
    A('s_add_u32 s62, s62, %d' % (WS_STAMP + kidx * (1 << 20)))
    A('s_mov_b64 exec, 1')
    A('v_mov_b32 v0, 0')
    for i in range(n):
        A('v_mov_b32 v1, s%d' % (64 + 2 * i))
        A('buffer_store_dword v1, v0, s[%d:%d], s62 offen offset:%d' % (srd_base, srd_base + 3, 4 * i))
    A('s_waitcnt vmcnt(0)')

def f2u(f):
    return struct.unpack('<I', struct.pack('<f', f))[0]
LOG2E = 1.4426950408889634
QSCALE = 0.25 * LOG2E


G_X = 0
G_W = 65536
KG_PT = G_W + 65536
KG_KC = KG_PT + 4096
KG_TS = 5696
KG_WO = KG_KC + 4 * KG_TS
K1_LDS = KG_WO + 2048

def k1_loader(A):
    A.label('k1_load')
    A('s_sub_u32 s33, s33, 4')
    A('s_lshl_b32 s28, s27, 1')
    A('s_add_u32 s28, s28, s26')
    A('s_and_b32 s28, s28, 7')
    A('s_lshl_b32 s29, s33, 10')
    A('s_add_u32 s29, s29, %d' % G_W)
    A('s_lshl_b32 s30, s33, 11')
    A('s_lshl_b32 s31, s26, 6')
    A('s_lshl_b32 s32, s33, 4')
    A('s_add_u32 s31, s31, s32')
    A('v_lshrrev_b32 v9, 3, v1')
    A('v_add_u32 v2, s31, v9')
    A('v_lshlrev_b32 v2, 10, v2')
    A('v_lshrrev_b32 v10, 1, v9')
    A('v_xor_b32 v10, v10, v1')
    A('v_and_b32 v10, 7, v10')
    A('v_lshlrev_b32 v10, 4, v10')
    A('v_add_u32 v3, v2, v10')
    A('v_xor_b32 v10, 64, v10')
    A('v_add_u32 v2, v2, v10')
    A('v_add_u32 v2, 8192, v2')
    A('s_lshl_b32 s32, s33, 3')
    A('v_add_u32 v10, s32, v9')
    A('v_mul_u32_u24 v4, 3072, v10')
    A('v_bfe_u32 v11, v9, 1, 1')
    A('v_lshlrev_b32 v11, 2, v11')
    A('v_xor_b32 v11, v11, v1')
    A('v_and_b32 v11, 7, v11')
    A('v_lshlrev_b32 v11, 4, v11')
    A('s_lshl_b32 s32, s27, 7')
    A('v_add3_u32 v4, v4, v11, s32')
    A('v_add_u32 v5, 1024, v4')
    A('v_add_u32 v12, 2048, v4')
    A('s_waitcnt lgkmcnt(0)')
    srd(A, 12, 4, 2048 * 1024)
    srd(A, 16, 6, 512 * 3072)
    def koff(piece, half):
        A('s_add_u32 s36, s28, %d' % piece)
        A('s_and_b32 s36, s36, 7')
    def need(j):
        if j < 8:
            koff(j, 0)
            A('s_lshl_b32 s37, s36, 7')
            A('s_mul_i32 s38, s36, %d' % (64 * 3072))
            A('s_add_u32 m0, s30, %d' % (G_X + j * 8192))
            A('s_add_u32 s39, s38, %d' % (32 * 3072))
            A('buffer_load_dwordx4 v3, s[12:15], s37 offen lds')
            A('s_add_u32 m0, s30, %d' % (G_X + j * 8192 + 1024))
            A('s_nop 0')
            A('buffer_load_dwordx4 v2, s[12:15], s37 offen lds')
            for h, so in ((0, 38), (1, 39)):
                slot = ((2 * j + h) % 8) * 8192
                A('s_add_u32 m0, s29, %d' % slot)
                A('s_nop 0')
                A('buffer_load_dwordx4 v5, s[16:19], s%d offen lds' % so)
                A('s_add_u32 m0, s29, %d' % (slot + 4096))
                A('s_nop 0')
                A('buffer_load_dwordx4 v12, s[16:19], s%d offen lds' % so)
            return 6
        jj = j - 8
        koff(jj, 0)
        A('s_mul_i32 s38, s36, %d' % (64 * 3072))
        A('s_add_u32 s39, s38, %d' % (32 * 3072))
        for h, so in ((0, 38), (1, 39)):
            A('s_add_u32 m0, s29, %d' % ((2 * jj + h) * 4096))
            A('s_nop 0')
            A('buffer_load_dwordx4 v4, s[16:19], s%d offen lds' % so)
        return 2
    issued = []
    def iss(j): issued.append((j, need(j)))
    iss(0); iss(1)
    stamp(A, 2)
    sched = {0: [2, 3], 1: [4], 2: [5], 3: [6], 4: [7], 5: [8, 9], 6: [10, 11], 7: [12, 13], 8: [14, 15]}
    for j in range(16):
        pos = max(i for i, (jj, n) in enumerate(issued) if jj == j)
        later = sum(n for (jj, n) in issued[pos + 1:])
        A('s_waitcnt vmcnt(%d)' % later)
        A('s_barrier')
        if j == 0: stamp(A, 3)
        for jn in sched.get(j, []): iss(jn)
    A('s_add_u32 s33, s33, 4')
    stamp(A, 4); stamp(A, 5); stamp(A, 6); stamp(A, 7); stamp(A, 8, True)
    if STAMP: srd(A, 20, 8, WS_SIZE)
    stamp_flush(A, 9, 0, 33, 20)
    A('s_endpgm')

def k1_comp(A):
    A.label('k1_comp')
    A('s_and_b32 s34, s33, 1')
    A('s_lshr_b32 s35, s33, 1')
    A('v_and_b32 v9, 31, v1')
    A('v_lshrrev_b32 v10, 5, v1')
    A('v_bfe_u32 v11, v1, 1, 3')
    A('v_xor_b32 v11, v11, v10')
    A('v_lshlrev_b32 v11, 4, v11')
    A('v_lshlrev_b32 v9, 7, v9')
    A('s_lshl_b32 s36, s34, 12')
    A('v_add3_u32 v6, v9, v11, s36')
    A('v_xor_b32 v7, 32, v6')
    A('v_xor_b32 v13, 64, v6')
    A('v_xor_b32 v14, 96, v6')
    A('v_lshrrev_b32 v9, 5, v1')
    A('v_lshlrev_b32 v9, 3, v9')
    A('v_bfe_u32 v10, v1, 2, 2')
    A('v_add_u32 v9, v9, v10')
    A('v_lshlrev_b32 v9, 7, v9')
    A('v_bfe_u32 v10, v1, 3, 1')
    A('v_xor_b32 v10, s35, v10')
    A('v_lshlrev_b32 v10, 6, v10')
    A('v_add_u32 v9, v9, v10')
    A('v_bfe_u32 v10, v1, 4, 1')
    A('v_lshlrev_b32 v10, 5, v10')
    A('v_and_b32 v11, 1, v1')
    A('v_lshlrev_b32 v11, 4, v11')
    A('v_add3_u32 v9, v9, v10, v11')
    A('v_bfe_u32 v10, v1, 1, 1')
    A('v_lshlrev_b32 v10, 3, v10')
    A('v_add_u32 v8, v9, v10')
    A('v_add_u32 v8, %d, v8' % G_W)
    AK, AV, AQ = 16, 32, 48
    for r in range(16, 64):
        A('v_mov_b32 v%d, 0' % r)
    A('s_waitcnt lgkmcnt(0)')
    srd(A, 20, 8, WS_SIZE)
    XR = [6, 7, 13, 14]
    FB = [64, 112]
    def reads(j):
        b = FB[j & 1]; L = []
        piece = j if j < 8 else j - 8
        for ks in range(4):
            r0 = b + 12 * ks
            L.append('ds_read_b128 %s, v%d offset:%d' % (vr(r0, 4), XR[ks], G_X + piece * 8192))
            h = ks >> 1; k2_ = ks & 1
            if j < 8:
                o = ((2 * j + h) % 8) * 8192 + k2_ * 2048
                for sec in range(2):
                    L.append('ds_read_b64_tr_b16 %s, v8 offset:%d' % (vr(r0 + 4 + 4 * sec, 2), o + sec * 4096))
                    L.append('ds_read_b64_tr_b16 %s, v8 offset:%d' % (vr(r0 + 6 + 4 * sec, 2), o + sec * 4096 + 512))
            else:
                o = (2 * (j - 8) + h) * 4096 + k2_ * 2048
                L.append('ds_read_b64_tr_b16 %s, v8 offset:%d' % (vr(r0 + 4, 2), o))
                L.append('ds_read_b64_tr_b16 %s, v8 offset:%d' % (vr(r0 + 6, 2), o + 512))
        return L
    def mfmas(j):
        b = FB[j & 1]; L = []
        for ks in range(4):
            r0 = b + 12 * ks
            if j < 8:
                L.append('v_mfma_f32_32x32x16_bf16 %s, %s, %s, %s' % (vr(AK, 16), vr(r0 + 4, 4), vr(r0, 4), vr(AK, 16)))
                L.append('v_mfma_f32_32x32x16_bf16 %s, %s, %s, %s' % (vr(AV, 16), vr(r0, 4), vr(r0 + 8, 4), vr(AV, 16)))
            else:
                L.append('v_mfma_f32_32x32x16_bf16 %s, %s, %s, %s' % (vr(AQ, 16), vr(r0 + 4, 4), vr(r0, 4), vr(AQ, 16)))
        return L
    A('s_lshl_b32 s36, s27, 2')
    A('s_lshl_b32 s37, s35, 1')
    A('s_add_u32 s36, s36, s37')
    A('s_lshl_b32 s36, s36, 6')
    A('s_lshl_b32 s37, s26, 1')
    A('s_add_u32 s36, s36, s37')
    A('s_add_u32 s36, s36, s34')
    A('s_lshl_b32 s36, s36, 10')
    A('s_add_u32 s37, s36, %d' % (64 * 1024))
    A('v_lshlrev_b32 v9, 4, v1')
    A('v_bfe_u32 v10, v1, 4, 1')
    A('v_lshlrev_b32 v10, 16, v10')
    A('v_lshrrev_b32 v11, 5, v1')
    A('v_lshlrev_b32 v11, 8, v11')
    A('v_and_b32 v12, 15, v1')
    A('v_lshlrev_b32 v12, 4, v12')
    A('v_add3_u32 v10, v10, v11, v12')
    A('s_add_u32 s38, s36, %d' % WS_KF)
    A('s_add_u32 s39, s37, %d' % WS_KF)
    A('s_add_u32 s40, s36, %d' % WS_VF)
    stamp(A, 2)
    for j in range(17):
        A('s_waitcnt lgkmcnt(0)')
        R = []
        if j < 16:
            if STAMP2 and j in (0,1,2,3,4,5,6,7): stamp(A, 9 + (j if j < 7 else 6))
            A('s_barrier')
            if j == 0: stamp(A, 3)
            if STAMP2B and j >= 8: stamp(A, 9 + (j - 8) if j < 15 else 15)
            R = reads(j) if not NOCOMP else []
        M = mfmas(j - 1) if (j > 0 and not NOCOMP) else []
        ri = 0
        if not M:
            for l in R: A(l)
        per = 5 if j < 8 else 4
        for mi, m in enumerate(M):
            A(m)
            for l in R[ri:ri + per]: A(l)
            ri += per
        for l in (R[ri:] if M else []): A(l)
        if j == 8: stamp(A, 4)
        if j == 9:
            for i in range(8):
                A('v_cvt_pk_bf16_f32 v%d, v%d, v%d' % (AK + i, AK + 2 * i, AK + 2 * i + 1))
            A('buffer_store_dwordx4 %s, v9, s[20:23], s38 offen%s' % (vr(AK, 4), ST1))
            A('buffer_store_dwordx4 %s, v9, s[20:23], s39 offen%s' % (vr(AK + 4, 4), ST1))
        if j == 10:
            for i in range(8):
                A('v_cvt_pk_bf16_f32 v%d, v%d, v%d' % (AV + i, AV + 2 * i, AV + 2 * i + 1))
            A('buffer_store_dwordx4 %s, v10, s[20:23], s40 offen%s' % (vr(AV, 4), ST1))
            A('buffer_store_dwordx4 %s, v10, s[20:23], s40 offen offset:512%s' % (vr(AV + 4, 4), ST1))
    stamp(A, 5)
    A.nop(12)
    A('s_mov_b32 s41, 0x%x' % f2u(QSCALE))
    for r in range(16):
        A('v_mul_f32 v%d, s41, v%d' % (AQ + r, AQ + r))
    for i in range(8):
        A('v_cvt_pk_bf16_f32 v%d, v%d, v%d' % (AQ + i, AQ + 2 * i, AQ + 2 * i + 1))
    A('buffer_store_dwordx4 %s, v9, s[20:23], s36 offen%s' % (vr(AQ, 4), ST1))
    A('buffer_store_dwordx4 %s, v9, s[20:23], s37 offen%s' % (vr(AQ + 4, 4), ST1))
    stamp(A, 6)
    if STAMP: A('s_waitcnt vmcnt(0)')
    stamp(A, 7); stamp(A, 8, True)
    stamp_flush(A, 16, 0, 33, 20)
    A('s_endpgm')

def k1_kgen(A):
    A.label('k1_kgen')
    A('s_load_dwordx8 s[12:19], s[0:1], %d' % KA_LAR)
    A('s_load_dwordx4 s[56:59], s[0:1], %d' % KA_LDT)
    A('s_load_dwordx2 s[44:45], s[0:1], %d' % KA_WO)
    A('s_sub_u32 s33, s33, 8')
    A('s_lshl_b32 s24, s24, 5')
    A('s_add_u32 s24, s24, s25')
    A('s_lshr_b32 s28, s33, 1')
    A('s_and_b32 s32, s33, 1')
    A('s_lshl_b32 s29, s24, 1')
    A('s_add_u32 s29, s29, s28')
    A('s_lshl_b32 s30, s29, 8')
    A('s_lshl_b32 s31, s32, 7')
    A('s_add_u32 s30, s30, s31')
    A('s_lshl_b32 s25, s24, 2')
    A('v_lshlrev_b32 v2, 1, v1')
    A('s_waitcnt lgkmcnt(0)')
    A('s_load_dword s26, s[56:57], s25')
    A('s_load_dword s27, s[58:59], s25')
    srd(A, 36, 12, 512 * 256)
    srd(A, 40, 14, 512 * 256)
    srd(A, 48, 16, 512 * 256)
    srd(A, 52, 18, 512 * 256)
    A('buffer_load_ushort v4, v2, s[36:39], s30 offen')
    A('buffer_load_ushort v5, v2, s[40:43], s30 offen')
    A('buffer_load_ushort v6, v2, s[48:51], s30 offen')
    A('buffer_load_ushort v7, v2, s[52:55], s30 offen')
    srd(A, 20, 8, WS_SIZE)
    srd(A, 60, 44, 512 * 1024)
    A('s_mov_b32 s12, s32')
    lzc = A.newlabel('kg_nozc')
    A('s_cmp_ge_u32 s2, 32')
    A('s_cbranch_scc1 %s' % lzc)
    A('s_cmp_lg_u32 s33, 0')
    A('s_cbranch_scc1 %s' % lzc)
    A('s_lshl_b32 s31, s2, 12')
    A('s_add_u32 s31, s31, %d' % WS_CNT)
    A('v_mov_b32 v8, 0')
    A('v_mov_b32 v9, 0')
    A('s_mov_b64 exec, 1')
    A('buffer_store_dword v8, v9, s[20:23], s31 offen sc1')
    A('s_mov_b64 exec, -1')
    A.label(lzc)
    lskip = A.newlabel('kg_nowo')
    A('s_cmp_lg_u32 s33, 3')
    A('s_cbranch_scc1 %s' % lskip)
    A('s_and_b32 s31, s24, 15')
    A('s_lshr_b32 s32, s24, 4')
    A('v_lshrrev_b32 v8, 2, v1')
    A('v_lshlrev_b32 v8, 10, v8')
    A('v_and_b32 v9, 3, v1')
    A('v_lshlrev_b32 v9, 4, v9')
    A('v_add_u32 v8, v8, v9')
    A('s_lshl_b32 s34, s32, 15')
    A('s_lshl_b32 s35, s31, 6')
    A('s_add_u32 s34, s34, s35')
    A('s_mov_b32 m0, %d' % KG_WO)
    A('s_add_u32 s35, s34, 16384')
    A('buffer_load_dwordx4 v8, s[60:63], s34 offen lds')
    A('s_mov_b32 m0, %d' % (KG_WO + 1024))
    A('s_nop 0')
    A('buffer_load_dwordx4 v8, s[60:63], s35 offen lds')
    A.label(lskip)
    A('s_mul_i32 s34, s33, %d' % KG_TS)
    A('s_add_u32 s34, s34, %d' % KG_KC)
    A('s_mul_i32 s13, s28, %d' % (2 * KG_TS))
    A('s_add_u32 s13, s13, %d' % KG_KC)
    SKC = 34
    A('v_and_b32 v12, 15, v1')
    A('v_cvt_f32_u32 v13, v12')
    PB = 13
    A('s_lshl_b32 s35, s28, 11')
    A('s_lshl_b32 s31, s12, 10')
    A('s_add_u32 s35, s35, s31')
    A('s_add_u32 s35, s35, %d' % KG_PT)
    A('v_lshlrev_b32 v10, 4, v1')
    A('v_add_u32 v10, s35, v10')
    A('v_lshrrev_b32 v11, 4, v1')
    A('v_lshlrev_b32 v11, 6, v11')
    A('v_add_u32 v11, s35, v11')
    CA = 136
    A('v_lshrrev_b32 v16, 4, v1')
    A('v_lshlrev_b32 v16, 6, v16')
    A('v_add_u32 v16, v16, v12')
    A('v_cvt_f32_u32 v16, v16')
    for r in range(4):
        d = CA + r
        if r: A('v_add_f32 v%d, 0x%x, v16' % (d, f2u(float(16 * r))))
        else: A('v_mov_b32 v%d, v16' % d)
        A('v_lshrrev_b32 v%d, 14, v%d' % (d, d))
        A('v_subrev_u32 v%d, 0x%x, v%d' % (d, 4 * 0x3f7f, d))
        A('v_max_i32 v%d, 0, v%d' % (d, d))
        A('v_add_u32 v%d, s%d, v%d' % (d, SKC, d))
    GP = 152
    A('s_lshl_b32 s35, s12, 10')
    A('v_lshlrev_b32 v14, 3, v1')
    A('v_add_u32 v14, s35, v14')
    A('v_sub_u32 v17, 2047, v14')
    A('v_cvt_f32_i32 v17, v17')
    A('s_mov_b32 s35, 0x3f7f3f7f')
    for i in range(8):
        d0 = ((2 * i) & 7) + 512 * ((2 * i) >> 3); d1 = d0 + 1
        A('v_add_f32 v18, 0x%x, v17' % f2u(float(-d0)))
        A('v_add_f32 v19, 0x%x, v17' % f2u(float(-d1)))
        A('v_cvt_pk_bf16_f32 v%d, v18, v19' % (GP + i))
    for i in range(8):
        A('v_pk_sub_u16 v%d, v%d, s35 clamp' % (GP + i, GP + i))
    for i in range(8):
        A('v_pk_lshlrev_b16 v%d, 2, v%d op_sel_hi:[0,1]' % (GP + i, GP + i))
    A('s_waitcnt lgkmcnt(0)')
    A('s_lshl_b32 s35, s28, 4')
    A('s_lshr_b32 s26, s26, s35')
    A('s_lshl_b32 s26, s26, 16')
    A('s_lshr_b32 s27, s27, s35')
    A('s_lshl_b32 s27, s27, 16')
    L2E_HI = f2u(LOG2E)
    L2E_LO = f2u(LOG2E - struct.unpack('<f', struct.pack('<I', L2E_HI))[0])
    LN2 = f2u(math.log(2.0))
    def exp_bf16(dst, src, t0, t1):
        A('v_mul_f32 v%d, 0x%x, v%d' % (t0, L2E_HI, src))
        A('v_mov_b32 v%d, 0x%x' % (t1, L2E_HI))
        A('v_fma_f32 v%d, v%d, v%d, -v%d' % (t1, src, t1, t0))
        A('v_fmac_f32 v%d, 0x%x, v%d' % (t1, L2E_LO, src))
        A('v_exp_f32 v%d, v%d' % (t0, t0))
        A('v_mul_f32 v%d, 0x%x, v%d' % (t1, LN2, t1))
        A('v_fma_f32 v%d, v%d, v%d, v%d' % (t0, t0, t1, t0))
        A('v_cvt_pk_bf16_f32 v%d, v%d, v%d' % (t0, t0, t0))
        A('v_lshlrev_b32 v%d, 16, v%d' % (dst, t0))
    A('v_mov_b32 v20, s26')
    exp_bf16(20, 20, 21, 22)
    stamp(A, 2)
    A('s_waitcnt vmcnt(0)')
    stamp(A, 3)
    for r in range(4):
        A('v_lshlrev_b32 v%d, 16, v%d' % (4 + r, 4 + r))
    exp_bf16(4, 4, 21, 22)
    A('v_mul_f32 v4, v4, v20')
    A('v_mul_f32 v4, 0x%x, v4' % f2u(-LOG2E))
    A('v_mul_f32 v5, v5, v20')
    A('v_mul_f32 v5, 0x%x, v5' % f2u(1.0 / (2 * math.pi)))
    A('v_mul_f32 v6, v6, v20')
    A('v_mul_f32 v7, v7, v20')
    A('v_add_f32 v6, v6, v6')
    A('v_add_f32 v7, v7, v7')
    A('ds_write_b128 v10, v[4:7]')
    A('v_mul_f32 v16, 0x45000000, v4')
    A('v_mul_f32 v17, 0x45000000, v5')
    A('v_exp_f32 v16, v16')
    A('v_fract_f32 v17, v17')
    A('v_cos_f32 v18, v17')
    A('v_sin_f32 v19, v17')
    A('s_nop 0')
    A('v_mul_f32 v18, v18, v6')
    A('v_fma_f32 v18, -v19, v7, v18')
    A('v_mul_f32 v22, v18, v16')
    for ctl in ('row_shr:1', 'row_shr:2', 'row_shr:4', 'row_shr:8'):
        A('s_nop 1')
        A('v_add_f32_dpp v22, v22, v22 %s row_mask:0xf bank_mask:0xf bound_ctrl:0' % ctl)
    A('s_nop 1')
    A('v_add_f32_dpp v22, v22, v22 row_bcast:15 row_mask:0xa bank_mask:0xf')
    A('s_nop 1')
    A('v_add_f32_dpp v22, v22, v22 row_bcast:31 row_mask:0xc bank_mask:0xf')
    V2048 = 22
    A('v_cmp_eq_u32 vcc, 0, v1')
    A('s_cmp_eq_u32 s12, 0')
    A('s_cselect_b32 s27, s27, 0')
    A('v_mov_b32 v21, s27')
    A('v_cndmask_b32 v21, 0, v21, vcc')
    VDSK = 21
    ACC = 24
    AF = 40
    BF = 56
    PR = [[72, 76, 80, 84], [88, 92, 96, 100]]
    WK = [104, 112, 120, 128]
    A('s_waitcnt lgkmcnt(0)')
    for q in range(4):
        A('ds_read_b128 %s, v11 offset:%d' % (vr(PR[0][q], 4), q * 16))
    def sq(re, im, t):
        if OMOD:
            return ['v_mul_f32 v%d, v%d, v%d' % (t, im, im), 'v_mul_f32_e64 v%d, v%d, v%d mul:2' % (im, re, im), 'v_fma_f32 v%d, v%d, v%d, -v%d' % (re, re, re, t)]
        return ['v_mul_f32 v%d, v%d, v%d' % (t, im, im), 'v_add_f32 v%d, v%d, v%d' % (t + 1, re, re),
                'v_fma_f32 v%d, v%d, v%d, -v%d' % (re, re, re, t), 'v_mul_f32 v%d, v%d, v%d' % (im, t + 1, im)]
    def cmul(dr, di, xr, xi, yr, yi, t):
        return ['v_mul_f32 v%d, v%d, v%d' % (t, xi, yi), 'v_mul_f32 v%d, v%d, v%d' % (t + 1, xi, yr),
                'v_fma_f32 v%d, v%d, v%d, v%d' % (di, xr, yi, t + 1), 'v_fma_f32 v%d, v%d, v%d, -v%d' % (dr, xr, yr, t)]
    def chain(m, pr, wk):
        Z, T, W, TW = wk, wk + 2, wk + 4, wk + 6
        t0, t1 = W, W + 1
        c = ['v_mul_f32 v%d, v%d, v%d' % (t0, pr, PB), 'v_mul_f32 v%d, v%d, v%d' % (t1, pr + 1, PB),
             'v_exp_f32 v%d, v%d' % (t0, t0), 'v_fract_f32 v%d, v%d' % (t1, t1),
             'v_cos_f32 v%d, v%d' % (Z, t1), 'v_sin_f32 v%d, v%d' % (Z + 1, t1),
             'v_mul_f32 v%d, v%d, v%d' % (Z, Z, t0), 'v_mul_f32 v%d, v%d, v%d' % (Z + 1, Z + 1, t0)]
        for o in range(4):
            c += ['v_cvt_pk_bf16_f32 v%d, v%d, v%d' % (BF + 4 * o + m, Z, Z + 1)] + sq(Z, Z + 1, T)
        c += cmul(W, W + 1, Z, Z + 1, pr + 2, pr + 3, TW)
        for o in range(4):
            c += ['v_cvt_pk_bf16_f32 v%d, v%d, -v%d' % (AF + 4 * o + m, W, W + 1)]
            if o < 3: c += cmul(W, W + 1, W, W + 1, Z, Z + 1, TW)
            if o < 2: c += sq(Z, Z + 1, T)
        return c
    stream = []
    for st in range(4):
        pb = st & 1
        stream.append('s_waitcnt lgkmcnt(0)')
        if st + 1 < 4:
            for q in range(4):
                stream.append('ds_read_b128 %s, v11 offset:%d' % (vr(PR[pb ^ 1][q], 4), (st + 1) * 256 + q * 16))
        ch = [chain(m, PR[pb][m], WK[m]) for m in range(4)]
        for i in range(len(ch[0])):
            for m in range(4): stream.append(ch[m][i])
        stream.append('s_nop 1')
        for o in range(4):
            c = '0' if st == 0 else vr(ACC + 4 * o, 4)
            stream.append('v_mfma_f32_16x16x32_bf16 %s, %s, %s, %s' % (vr(ACC + 4 * o, 4), vr(AF + 4 * o, 4), vr(BF + 4 * o, 4), c))
    NB = KG_NB
    per = len(stream) / NB
    nxt = 0
    for i, l in enumerate(stream):
        if nxt < NB and i >= nxt * per and not (i > 0 and stream[i - 1].startswith('s_nop')) and not l.startswith('v_mfma'):
            A('s_barrier'); nxt += 1
        if not (NOKG and l.startswith('v_') ): A(l)
    assert nxt == NB
    stamp(A, 4)
    A('v_mov_b32 v61, s%d' % SKC)
    A('v_mov_b32 v62, s13')
    A.nop(6)
    A('v_add_f32 v%d, v%d, v%d' % (ACC, ACC, VDSK))
    for r in range(4):
        A('ds_write_b32 v%d, v%d' % (CA + r, ACC + r))
    A('s_mov_b32 exec_lo, 0')
    for r in range(4, 16):
        A('ds_write_b32 v%d, v%d offset:%d' % (CA + (r & 3), ACC + r, 512 * (r >> 2)))
    A('s_brev_b32 exec_hi, 1')
    A('ds_write_b32 v61, v%d offset:%d' % (V2048, 4 * 1409))
    A('s_mov_b64 exec, -1')
    AD = 64; F = 40; F2 = 104
    for e in range(16):
        A('v_add_u32_sdwa v%d, v%d, v62 dst_sel:DWORD dst_unused:UNUSED_PAD src0_sel:WORD_%d src1_sel:DWORD' % (AD + e, GP + e // 2, e & 1))
    A('s_waitcnt lgkmcnt(0)')
    A('s_barrier')
    stamp(A, 5)
    for e in range(16):
        A('ds_read_b32 v%d, v%d' % (F + e, AD + e))
        A('ds_read_b32 v%d, v%d offset:%d' % (F2 + e, AD + e, KG_TS))
    A('v_lshlrev_b32 v19, 1, v14')
    A('s_lshl_b32 s35, s29, 12')
    A('s_add_u32 s35, s35, %d' % WS_KR)
    A('s_waitcnt lgkmcnt(0)')
    for e in range(16):
        A('v_add_f32 v%d, v%d, v%d' % (F + e, F + e, F2 + e))
    for i in range(8):
        A('v_cvt_pk_bf16_f32 v%d, v%d, v%d' % (88 + i, F + 2 * i, F + 2 * i + 1))
    A('buffer_store_dwordx4 v[88:91], v19, s[20:23], s35 offen' + ST1)
    A('buffer_store_dwordx4 v[92:95], v19, s[20:23], s35 offen offset:1024' + ST1)
    lend = A.newlabel('kg_end')
    A('s_cmp_lg_u32 s33, 3')
    A('s_cbranch_scc1 %s' % lend)
    A('v_lshrrev_b32 v2, 5, v1')
    A('v_lshlrev_b32 v2, 3, v2')
    A('v_bfe_u32 v3, v1, 2, 2')
    A('v_add_u32 v2, v2, v3')
    A('v_lshlrev_b32 v2, 6, v2')
    A('v_bfe_u32 v3, v1, 4, 1')
    A('v_lshlrev_b32 v3, 1, v3')
    A('v_bfe_u32 v4, v1, 1, 1')
    A('v_add_u32 v3, v3, v4')
    A('v_and_b32 v4, 1, v1')
    A('v_lshlrev_b32 v4, 2, v4')
    A('v_add_u32 v3, v3, v4')
    A('v_lshlrev_b32 v3, 3, v3')
    A('v_add_u32 v2, v2, v3')
    A('v_add_u32 v2, %d, v2' % KG_WO)
    A('ds_read_b64_tr_b16 v[4:5], v2')
    A('ds_read_b64_tr_b16 v[6:7], v2 offset:256')
    A('ds_read_b64_tr_b16 v[8:9], v2 offset:1024')
    A('ds_read_b64_tr_b16 v[10:11], v2 offset:1280')
    A('s_and_b32 s31, s24, 15')
    A('s_lshr_b32 s32, s24, 4')
    A('s_lshl_b32 s31, s31, 5')
    A('s_lshl_b32 s32, s32, 1')
    A('s_add_u32 s31, s31, s32')
    A('s_lshl_b32 s31, s31, 10')
    A('s_add_u32 s31, s31, %d' % WS_WOF)
    A('v_lshlrev_b32 v3, 4, v1')
    A('s_waitcnt lgkmcnt(0)')
    A('buffer_store_dwordx4 v[4:7], v3, s[20:23], s31 offen' + ST1)
    A('buffer_store_dwordx4 v[8:11], v3, s[20:23], s31 offen offset:1024' + ST1)
    A.label(lend)
    for _ in range(16 - (KG_NB + 1)):
        A('s_barrier')
    stamp(A, 6)
    if STAMP: A('s_waitcnt vmcnt(0)')
    stamp(A, 7); stamp(A, 8, True)
    if STAMP: A('s_add_u32 s33, s33, 8')
    stamp_flush(A, 9, 0, 33, 20)
    A('s_endpgm')

def k1(A):
    A('.p2align 8')
    A('.type k1_kernel,@function')
    A.label('k1_kernel')
    A('s_cmp_ge_u32 s2, 256')
    A('s_cbranch_scc1 k1_exit')
    stamp(A, 0, True); stamp(A, 1)
    A('s_load_dwordx4 s[4:7], s[0:1], %d' % KA_X)
    A('s_load_dwordx2 s[8:9], s[0:1], %d' % KA_WS)
    A('v_lshrrev_b32 v2, 6, v0')
    A('v_and_b32 v1, 63, v0')
    A('s_and_b32 s24, s2, 7')
    A('v_readfirstlane_b32 s33, v2')
    A('s_lshr_b32 s25, s2, 3')
    A('s_and_b32 s26, s24, 3')
    A('s_lshl_b32 s26, s26, 3')
    A('s_and_b32 s27, s25, 7')
    A('s_add_u32 s26, s26, s27')
    A('s_lshr_b32 s27, s24, 2')
    A('s_lshl_b32 s27, s27, 2')
    A('s_lshr_b32 s28, s25, 3')
    A('s_add_u32 s27, s27, s28')
    A('s_cmp_ge_u32 s33, 8')
    A('s_cbranch_scc1 k1_kgen')
    A('s_cmp_lt_u32 s33, 4')
    A('s_cbranch_scc1 k1_comp')
    k1_loader(A)
    k1_comp(A)
    k1_kgen(A)
    A.label('k1_exit')
    A('s_endpgm')

L_K = 0
L_V = 65536
VST = 1120
L_KR = L_V + 64 * VST
L_U = L_KR + 4 * 4160
K2_LDS = L_U + 2 * 4608
K2_B2 = 12
K2_B3 = 32
NOCONV = False
FUSE3 = False
SPIN_MAX = 0x100000
OMOD = True
KG_NB = 15
NOCOMP = False
NOKG = False
STAMP2 = False
STAMP2B = False
NOKGEN = False
NOGEMM = False

def k2_attn(A):
    Q = 4
    KB = [8, 12]; V0 = [16, 20]; V1 = [24, 28]; P = 32; O = 40; S = [56, 72]; NM = 88
    VK, VA, VB = 2, 3, 105
    A.label('k2_attn')
    stamp(A, 0, True); stamp(A, 1)
    A('s_lshl_b32 s28, s25, 6')
    A('s_lshl_b32 s29, s26, 3')
    A('s_add_u32 s29, s29, s24')
    A('s_add_u32 s32, s28, s29')
    A('s_lshl_b32 s32, s32, 10')
    A('v_lshlrev_b32 v104, 4, v1')
    A('s_lshl_b32 s35, s24, 10')
    A('s_mul_i32 s36, s24, %d' % VST)
    for r in range(2):
        A('s_add_u32 s33, s24, %d' % (8 * r))
        A('s_add_u32 s33, s33, s28')
        A('s_lshl_b32 s33, s33, 10')
        A('s_add_u32 s34, s33, %d' % WS_VF)
        A('s_add_u32 s33, s33, %d' % WS_KF)
        A('s_add_u32 m0, s35, %d' % (L_K + r * 8192))
        A('s_nop 0')
        A('buffer_load_dwordx4 v104, s[12:15], s33 offen lds')
        if r == 0:
            A('buffer_load_dwordx4 v[4:7], v104, s[12:15], s32 offen')
        A('s_add_u32 m0, s36, %d' % (L_V + r * 8 * VST))
        A('s_nop 0')
        A('buffer_load_dwordx4 v104, s[12:15], s34 offen lds')
    A('v_and_b32 v106, 31, v1')
    A('v_lshrrev_b32 v107, 5, v1')
    A('v_lshlrev_b32 v107, 8, v107')
    A('v_lshl_add_u32 v107, v106, 4, v107')
    A('v_mov_b32 v108, 1040')
    A('v_mov_b32 v109, 1104')
    A('v_subrev_u32 v110, 20, v106')
    A('v_cmp_gt_u32 vcc, 8, v110')
    A('s_nop 1')
    A('v_cndmask_b32 v108, v108, v109, vcc')
    A('v_cmp_eq_u32 vcc, 16, v106')
    A('v_mov_b32 v109, 1024')
    A('s_nop 0')
    A('v_cndmask_b32 v108, v108, v109, vcc')
    A('v_cmp_eq_u32 vcc, 20, v106')
    A('v_mov_b32 v109, 1088')
    A('s_nop 0')
    A('v_cndmask_b32 v108, v108, v109, vcc')
    A('v_add_u32 v109, 512, v107')
    A('v_cmp_gt_u32 vcc, 16, v106')
    A('s_nop 1')
    A('v_cndmask_b32 v110, v108, v107, vcc')
    A('v_cndmask_b32 v111, v108, v109, vcc')
    A('v_add_u32 v110, %d, v110' % L_V)
    A('v_add_u32 v111, %d, v111' % L_V)
    A('s_mov_b32 s42, 0')
    stamp(A, 2)
    A('s_waitcnt vmcnt(0)')
    A('s_barrier')
    stamp(A, 3)

    def prologue(exact):
        A('v_mov_b32 v%d, v104' % VK)
        A('v_mov_b32 v%d, v110' % VA)
        A('v_mov_b32 v%d, v111' % VB)
        A('ds_read_b128 %s, v%d' % (vr(KB[0], 4), VK))
        A('ds_read_b128 %s, v%d offset:1024' % (vr(KB[1], 4), VK))
        A('ds_read_b128 %s, v%d' % (vr(V0[0], 4), VA))
        A('ds_read_b128 %s, v%d' % (vr(V1[0], 4), VB))
        for r in range(O, O + 16):
            A('v_mov_b32 v%d, 0' % r)
        for r in range(P, P + 8):
            A('v_mov_b32 v%d, 0' % r)
        for r in range(4):
            A('v_mov_b32 v%d, 0' % (V1[1] + r))
        A('s_waitcnt lgkmcnt(3)')
        A('v_mfma_f32_32x32x16_bf16 %s, %s, %s, %s' % (vr(S[0], 16), vr(KB[0], 4), vr(Q, 4), vr(NM, 16) if exact else '0'))
        A.nop(12)
    def tile(u, koff, voff, exact, do_qk=True, do_k=True, do_v=True):
        p = u & 1
        cur = S[p]; nxt = S[p ^ 1]
        def e(i): A('v_exp_f32 v%d, v%d' % (cur + i, cur + i))
        def c(i): A('v_cvt_pk_bf16_f32 v%d, v%d, v%d' % (P + i, cur + 2 * i, cur + 2 * i + 1))
        A('s_waitcnt lgkmcnt(0)')
        e(0); e(1)
        A('v_mfma_f32_32x32x16_bf16 %s, %s, %s, %s' % (vr(O, 16), vr(V1[p ^ 1], 4), vr(P + 4, 4), vr(O, 16)))
        if do_v: A('ds_read_b128 %s, v%d offset:%d' % (vr(V1[p ^ 1], 4), VB, voff))
        for i in range(2, 7): e(i)
        if do_qk: A('v_mfma_f32_32x32x16_bf16 %s, %s, %s, %s' % (vr(nxt, 16), vr(KB[p ^ 1], 4), vr(Q, 4), vr(NM, 16) if exact else '0'))
        if do_k: A('ds_read_b128 %s, v%d offset:%d' % (vr(KB[p], 4), VK, koff))
        e(7); e(8)
        for i in range(4): c(i)
        for i in range(9, 12): e(i)
        A('v_mfma_f32_32x32x16_bf16 %s, %s, %s, %s' % (vr(O, 16), vr(V0[p], 4), vr(P, 4), vr(O, 16)))
        if do_v: A('ds_read_b128 %s, v%d offset:%d' % (vr(V0[p ^ 1], 4), VA, voff))
        for i in range(12, 16): e(i)
        for i in range(4, 8): c(i)
    def final_pv():
        A('s_waitcnt lgkmcnt(0)')
        A('s_nop 0')
        A('v_mfma_f32_32x32x16_bf16 %s, %s, %s, %s' % (vr(O, 16), vr(V1[1], 4), vr(P + 4, 4), vr(O, 16)))
        A.nop(12)
    prologue(False)
    vbase = 0
    for t in range(64):
        if t == K2_B2:
            stamp(A, 6); A('s_barrier'); stamp(A, 7)
        if t == K2_B3:
            stamp(A, 11); A('s_barrier'); stamp(A, 12)
        if t == 32:
            A('v_add_u32 v%d, %d, v%d' % (VA, 32 * VST, VA))
            A('v_add_u32 v%d, %d, v%d' % (VB, 32 * VST, VB))
            vbase = 32
        tile(t, (t + 2) * 1024, (t + 1 - vbase) * VST, False, do_qk=(t < 63), do_k=(t < 62), do_v=(t < 63))
    final_pv()
    lfin = 'k2_fin'
    A('v_mov_b32 v105, 0x1f800000')
    A('v_mov_b32 v106, 0x5f800000')
    A('v_cmp_le_f32 vcc, v105, v%d' % (O + 8))
    A('v_cmp_le_f32 s[36:37], v%d, v106' % (O + 8))
    A('v_mov_b32 v105, 0x7f800000')
    A('s_nop 0')
    A('s_and_b64 vcc, vcc, s[36:37]')
    for r in range(8):
        A('v_cmp_lt_f32 s[36:37], abs(v%d), v105' % (O + r))
        A('s_nop 1')
        A('s_and_b64 vcc, vcc, s[36:37]')
    A('s_not_b64 s[36:37], vcc')
    A('s_cmp_eq_u64 s[36:37], 0')
    A('s_cbranch_scc0 k2_fallback')
    A.label(lfin)
    A('v_rcp_f32 v105, v%d' % (O + 8))
    A('s_nop 0')
    for r in range(8):
        A('v_mul_f32 v%d, v%d, v105' % (O + r, O + r))
    for i in range(4):
        A('v_cvt_pk_bf16_f32 v%d, v%d, v%d' % (108 + i, O + 2 * i, O + 2 * i + 1))
    A('s_lshl_b32 s32, s29, 5')
    A('s_add_u32 s32, s32, s25')
    A('s_lshl_b32 s32, s32, 10')
    A('s_add_u32 s32, s32, %d' % WS_OF)
    stamp(A, 8)
    A('buffer_store_dwordx4 v[108:111], v104, s[12:15], s32 offen' + (' sc1' if FUSE3 else ST2))
    if not FUSE3:
        if STAMP: A('s_waitcnt vmcnt(0)')
        stamp(A, 9); stamp(A, 10, True)
        stamp_flush(A, 13, 1, 24, 12)
        A('s_endpgm')
    else:
        A('s_branch k2_proj')
    A.label('k2_fallback')
    A('v_mov_b32 v105, 0xff800000')
    A('v_mov_b32 v%d, v104' % VK)
    A('s_mov_b32 s38, 0')
    A.label('k2_maxloop')
    A('ds_read_b128 %s, v%d' % (vr(KB[0], 4), VK))
    A('s_waitcnt lgkmcnt(0)')
    A('v_mfma_f32_32x32x16_bf16 %s, %s, %s, 0' % (vr(S[0], 16), vr(KB[0], 4), vr(Q, 4)))
    A.nop(14)
    for i in range(8):
        A('v_max3_f32 v105, v105, v%d, v%d' % (S[0] + 2 * i, S[0] + 2 * i + 1))
    A('v_add_u32 v%d, 1024, v%d' % (VK, VK))
    A('s_add_u32 s38, s38, 1')
    A('s_cmp_lt_u32 s38, 64')
    A('s_cbranch_scc1 k2_maxloop')
    A('v_mov_b32 v106, v105')
    A.nop(2)
    A('v_permlane32_swap_b32 v105, v106')
    A.nop(2)
    A('v_max_f32 v105, v105, v106')
    for r in range(NM, NM + 16):
        A('v_sub_f32 v%d, 0, v105' % r)
    prologue(True)
    A('s_mov_b32 s38, 0')
    A.label('k2_exloop')
    tile(0, 2048, VST, True)
    tile(1, 3072, 2 * VST, True)
    A('v_add_u32 v%d, 2048, v%d' % (VK, VK))
    A('v_add_u32 v%d, %d, v%d' % (VA, 2 * VST, VA))
    A('v_add_u32 v%d, %d, v%d' % (VB, 2 * VST, VB))
    A('s_add_u32 s38, s38, 1')
    A('s_cmp_lt_u32 s38, 32')
    A('s_cbranch_scc1 k2_exloop')
    final_pv()
    A('s_branch k2_fin')


def k2_proj(A):
    A.label('k2_proj')
    A('s_waitcnt vmcnt(0)')
    A('s_barrier')
    stamp(A, 9)
    lns = A.newlabel('pj_nosig')
    A('s_cmp_lg_u32 s24, 0')
    A('s_cbranch_scc1 %s' % lns)
    A('s_lshl_b32 s33, s26, 12')
    A('s_add_u32 s33, s33, %d' % WS_CNT)
    A('v_mov_b32 v2, s33')
    A('v_mov_b32 v3, 1')
    A('s_mov_b64 exec, 1')
    A('buffer_atomic_add v3, v2, s[12:15], 0 offen')
    A('s_mov_b64 exec, -1')
    A.label(lns)
    A('s_lshl_b32 s33, s26, 2')
    A('s_lshr_b32 s34, s25, 3')
    A('s_add_u32 s33, s33, s34')
    A('s_and_b32 s34, s25, 7')
    A('s_cmp_lt_u32 s24, 4')
    A('s_cbranch_scc1 k2_pj_comp')
    A('s_sub_u32 s35, s24, 4')
    A('s_and_b32 s36, s35, 1')
    A('s_lshr_b32 s37, s35, 1')
    A('s_lshl_b32 s38, s34, 1')
    A('s_add_u32 s38, s38, s36')
    A('s_lshl_b32 s38, s38, 5')
    A('s_lshl_b32 s39, s37, 4')
    A('s_add_u32 s38, s38, s39')
    A('s_lshl_b32 s38, s38, 10')
    A('s_add_u32 s38, s38, %d' % WS_WOF)
    A('s_lshl_b32 s39, s36, 15')
    A('s_lshl_b32 s40, s37, 14')
    A('s_add_u32 s39, s39, s40')
    A('s_add_u32 s39, s39, 65536')
    for j in range(16):
        A('s_add_u32 m0, s39, %d' % (j * 1024))
        A('s_nop 0')
        A('buffer_load_dwordx4 v104, s[12:15], s38 offen lds')
        A('s_add_u32 s38, s38, 1024')
    lnp = A.newlabel('pj_nopoll'); lp = A.newlabel('pj_poll'); lpd = A.newlabel('pj_polled')
    A('s_cmp_lg_u32 s24, 4')
    A('s_cbranch_scc1 %s' % lnp)
    A('s_lshl_b32 s40, s26, 12')
    A('s_add_u32 s40, s40, %d' % WS_CNT)
    A('v_mov_b32 v2, s40')
    A('s_mov_b32 s41, 0')
    A.label(lp)
    A('buffer_load_dword v3, v2, s[12:15], 0 offen sc1')
    A('s_waitcnt vmcnt(0)')
    A('v_readfirstlane_b32 s42, v3')
    A('s_add_u32 s41, s41, 1')
    A('s_nop 2')
    A('s_cmp_ge_u32 s42, 32')
    A('s_cbranch_scc1 %s' % lpd)
    A('s_cmp_ge_u32 s41, 0x%x' % SPIN_MAX)
    A('s_cbranch_scc1 %s' % lpd)
    A('s_sleep 1')
    A('s_branch %s' % lp)
    A.label(lpd)
    A.label(lnp)
    A('s_waitcnt vmcnt(0)')
    A('s_barrier')
    stamp(A, 11)
    A('s_lshl_b32 s38, s33, 1')
    A('s_add_u32 s38, s38, s36')
    A('s_lshl_b32 s38, s38, 5')
    A('s_lshl_b32 s40, s37, 2')
    A('s_add_u32 s38, s38, s40')
    A('s_lshl_b32 s38, s38, 10')
    A('s_add_u32 s38, s38, %d' % WS_OF)
    A('s_lshl_b32 s39, s36, 15')
    A('s_lshl_b32 s40, s37, 12')
    A('s_add_u32 s39, s39, s40')
    for g in range(4):
        for j in range(4):
            A('s_add_u32 m0, s39, %d' % (g * 8192 + j * 1024))
            A('s_add_u32 s40, s38, %d' % (g * 8192 + j * 1024))
            A('buffer_load_dwordx4 v104, s[12:15], s40 offen sc1 lds')
    for g in range(4):
        A('s_waitcnt vmcnt(%d)' % (4 * (3 - g)))
        A('s_barrier')
    stamp(A, 12); stamp(A, 10, True)
    stamp_flush(A, 13, 1, 24, 12)
    A('s_endpgm')
    A.label('k2_pj_comp')
    A('s_lshr_b32 s35, s24, 1')
    A('s_and_b32 s36, s24, 1')
    A('s_lshl_b32 s37, s35, 15')
    A('v_add_u32 v3, s37, v104')
    A('s_lshl_b32 s37, s36, 15')
    A('s_add_u32 s37, s37, 65536')
    A('v_add_u32 v4, s37, v104')
    A('s_lshl_b32 s37, s35, 5')
    A('s_lshl_b32 s38, s33, 6')
    A('s_add_u32 s37, s37, s38')
    A('s_lshl_b32 s37, s37, 11')
    A('s_lshl_b32 s38, s36, 6')
    A('s_lshl_b32 s39, s34, 7')
    A('s_add_u32 s38, s38, s39')
    A('s_add_u32 s37, s37, s38')
    A('v_and_b32 v5, 31, v1')
    A('v_lshlrev_b32 v5, 11, v5')
    A('v_lshrrev_b32 v6, 5, v1')
    A('v_lshlrev_b32 v6, 5, v6')
    A('v_add_u32 v5, v5, v6')
    ACC = 8; WF = 24; OFR = 56
    A('s_barrier')
    stamp(A, 11)
    for g in range(4):
        for j in range(8):
            A('ds_read_b128 %s, v4 offset:%d' % (vr(WF + 4 * j, 4), (8 * g + j) * 1024))
        A('s_barrier')
        for j in range(8):
            A('ds_read_b128 %s, v3 offset:%d' % (vr(OFR + 4 * j, 4), (8 * g + j) * 1024))
        for j in range(8):
            A('s_waitcnt lgkmcnt(%d)' % (7 - j))
            c = '0' if (g == 0 and j == 0) else vr(ACC, 16)
            A('v_mfma_f32_32x32x16_bf16 %s, %s, %s, %s' % (vr(ACC, 16), vr(WF + 4 * j, 4), vr(OFR + 4 * j, 4), c))
    A.nop(12)
    for i in range(8):
        A('v_cvt_pk_bf16_f32 v%d, v%d, v%d' % (96 + i, ACC + 2 * i, ACC + 2 * i + 1))
    A('buffer_store_dwordx4 v[96:99], v5, s[20:23], s37 offen' + ST3)
    A('buffer_store_dwordx4 v[100:103], v5, s[20:23], s37 offen offset:16' + ST3)
    if STAMP: A('s_waitcnt vmcnt(0)')
    stamp(A, 12); stamp(A, 10, True)
    stamp_flush(A, 13, 1, 24, 12)
    A('s_endpgm')

def k2_conv(A):
    A.label('k2_conv')
    stamp(A, 0, True); stamp(A, 1)
    A('s_setprio 2')
    A('s_sub_u32 s28, s24, 8')
    A('v_lshlrev_b32 v2, 4, v1')
    A('s_mul_i32 s31, s28, 4160')
    A('s_add_u32 s31, s31, %d' % L_KR)
    A('v_mov_b32 v4, 0')
    A('v_mov_b32 v5, 0')
    A('v_lshlrev_b32 v6, 2, v1')
    A('v_add_u32 v6, s31, v6')
    A('s_mov_b32 exec_lo, 0xffff')
    A('s_mov_b32 exec_hi, 0')
    A('ds_write_b32 v6, v4 offset:4096')
    A('s_mov_b64 exec, -1')
    lz = A.newlabel('cv_nz')
    A('s_cmp_ge_u32 s28, 2')
    A('s_cbranch_scc1 %s' % lz)
    A('s_mul_i32 s33, s28, 4608')
    A('v_lshlrev_b32 v6, 3, v1')
    A('v_add_u32 v6, s33, v6')
    A('v_add_u32 v6, %d, v6' % L_U)
    A('ds_write_b64 v6, v[4:5]')
    A.label(lz)
    A('v_mul_u32_u24 v6, %d, v1' % VST)
    A('s_lshr_b32 s33, s28, 1')
    A('s_lshl_b32 s33, s33, 6')
    A('s_and_b32 s34, s28, 1')
    A('s_lshl_b32 s35, s34, 4')
    A('s_add_u32 s33, s33, s35')
    A('s_add_u32 s33, s33, %d' % (L_V + 1024))
    A('v_add_u32 v6, s33, v6')
    A('s_cmp_eq_u32 s34, 0')
    A('s_cselect_b32 s33, 0x3f803f80, 0')
    for r in range(8, 12):
        A('v_mov_b32 v%d, s33' % r)
    A('ds_write_b128 v6, v[8:11]')
    A('s_add_u32 s33, s28, 16')
    A('s_lshl_b32 s36, s25, 16')
    A('s_add_u32 s35, s28, 16')
    A('s_mul_i32 s39, s35, %d' % VST)
    A('s_lshl_b32 s35, s35, 10')
    A('s_waitcnt lgkmcnt(0)')
    stamp(A, 2)
    A('s_barrier')
    stamp(A, 3)
    for i in range(12):
        A('s_and_b32 s34, s33, 63')
        A('s_lshl_b32 s34, s34, 10')
        A('s_add_u32 s34, s34, s36')
        A('s_add_u32 s37, s34, %d' % WS_KF)
        A('s_add_u32 m0, s35, %d' % (L_K + i * 4096))
        A('s_add_u32 s34, s34, %d' % WS_VF)
        A('buffer_load_dwordx4 v2, s[12:15], s37 offen lds')
        A('s_add_u32 m0, s39, %d' % (L_V + i * 4 * VST))
        A('s_add_u32 s33, s33, 4')
        A('buffer_load_dwordx4 v2, s[12:15], s34 offen lds')
    lk = A.newlabel('cv_nk')
    A('s_bitcmp1_b32 s28, 0')
    A('s_cbranch_scc1 %s' % lk)
    A('s_lshl_b32 s29, s27, 13')
    A('s_lshl_b32 s30, s28, 11')
    A('s_add_u32 s29, s29, s30')
    A('s_add_u32 s29, s29, %d' % WS_KR)
    for j in range(4):
        A('s_add_u32 m0, s31, %d' % (j * 1024))
        A('s_nop 0')
        A('buffer_load_dwordx4 v2, s[12:15], s29 offen lds')
        A('s_add_u32 s29, s29, 1024')
    A.label(lk)
    A('s_waitcnt vmcnt(0) lgkmcnt(0)')
    A('s_barrier')
    stamp(A, 4)
    A('v_lshlrev_b32 v3, 11, v1')
    A('s_lshl_b32 s32, s28, 19')
    A('s_lshl_b32 s33, s27, 2')
    A('s_add_u32 s32, s32, s33')
    for q in range(4):
        A('buffer_load_dword v%d, v3, s[16:19], s32 offen' % (8 + 2 * q))
        A('buffer_load_dword v%d, v3, s[16:19], s32 offen offset:1024' % (9 + 2 * q))
        A('s_add_u32 s32, s32, %d' % (128 * 1024))
    lc = A.newlabel('cv_nc')
    A('s_bitcmp1_b32 s28, 0')
    A('s_cbranch_scc0 %s' % lc)
    A('v_add_u32 v6, s31, v2')
    for j in range(4):
        A('ds_read_b128 %s, v6 offset:%d' % (vr(16 + 4 * j, 4), 65536 - 4160 + 2 + j * 1024) if False else 'v_subrev_u32 v7, %d, v6' % (4160 - 2))
        break
    for j in range(4):
        A('ds_read_b128 %s, v7 offset:%d' % (vr(16 + 4 * j, 4), j * 1024))
    A('s_waitcnt lgkmcnt(0)')
    for j in range(4):
        A('ds_write_b128 v6, %s offset:%d' % (vr(16 + 4 * j, 4), j * 1024))
    A.label(lc)
    A('s_waitcnt vmcnt(0)')
    stamp(A, 5)
    A('s_mov_b32 s34, 0x05040100')
    A('s_mov_b32 s35, 0x07060302')
    A('v_lshlrev_b32 v6, 2, v1')
    A('s_lshl_b32 s33, s28, 10')
    A('s_add_u32 s33, s33, %d' % (L_U + 512))
    A('v_add_u32 v6, s33, v6')
    for q in range(4):
        A('v_perm_b32 v%d, v%d, v%d, s34' % (16 + 2 * q, 9 + 2 * q, 8 + 2 * q))
        A('v_perm_b32 v%d, v%d, v%d, s35' % (17 + 2 * q, 9 + 2 * q, 8 + 2 * q))
    for q in range(4):
        A('ds_write_b32 v6, v%d offset:%d' % (16 + 2 * q, 256 * q))
        A('ds_write_b32 v6, v%d offset:%d' % (17 + 2 * q, 256 * q + 4608))
    A('v_and_b32 v7, 15, v1')
    A('v_lshrrev_b32 v8, 4, v1')
    A('v_and_b32 v9, 1, v1')
    A('v_lshlrev_b32 v10, 3, v8')
    A('v_add_u32 v10, v10, v7')
    A('v_sub_u32 v10, v9, v10')
    A('v_add_u32 v10, 2054, v10')
    A('v_lshlrev_b32 v10, 1, v10')
    A('v_xor_b32 v9, 1, v9')
    A('v_mul_u32_u24 v9, 4160, v9')
    A('v_add_u32 v10, v10, v9')
    A('v_add_u32 v10, %d, v10' % (L_KR - 448))
    A('v_add_u32 v11, 8320, v10')
    A('v_lshlrev_b32 v12, 5, v7')
    A('v_lshlrev_b32 v13, 4, v8')
    A('v_sub_u32 v12, v12, v13')
    A('v_add_u32 v12, %d, v12' % (L_U + 528 - 448))
    A('s_lshl_b32 s33, s28, 9')
    A('v_add_u32 v13, s33, v12')
    A('s_sub_u32 s36, 7, s28')
    A('s_lshl_b32 s33, s36, 9')
    A('v_add_u32 v12, s33, v12')
    VKA, VKB_, VUA, VUB = 10, 11, 13, 12
    ACC = 16
    for r in range(ACC, ACC + 16):
        A('v_mov_b32 v%d, 0' % r)
    A('s_waitcnt lgkmcnt(0)')
    stamp(A, 6)
    A('s_barrier')
    stamp(A, 7)
    KF = [32, 40]
    UF = [48, 64]
    def kreads(k, buf):
        o = (7 - k) * 16
        for ci, va in ((0, VKA), (1, VKB_)):
            A('ds_read2_b32 %s, v%d offset0:%d offset1:%d' % (vr(KF[buf] + 4 * ci, 2), va, o, o + 1))
            A('ds_read2_b32 %s, v%d offset0:%d offset1:%d' % (vr(KF[buf] + 4 * ci + 2, 2), va, o + 2, o + 3))
    def ureads(k, buf, both):
        o = (7 - k) * 64
        if both:
            A('ds_read_b128 %s, v%d offset:%d' % (vr(UF[buf], 4), VUA, o))
            A('ds_read_b128 %s, v%d offset:%d' % (vr(UF[buf] + 4, 4), VUA, o + 4608))
        A('ds_read_b128 %s, v%d offset:%d' % (vr(UF[buf] + 8, 4), VUB, o))
        A('ds_read_b128 %s, v%d offset:%d' % (vr(UF[buf] + 12, 4), VUB, o + 4608))
    def mf(buf, both):
        lst = [(0, 0), (1, 1), (2, 0), (3, 1)] if both else [(2, 0), (3, 1)]
        for (ai, ci) in lst:
            acc = vr(ACC + 4 * ai, 4)
            A('v_mfma_f32_16x16x32_bf16 %s, %s, %s, %s' % (acc, vr(UF[buf] + 4 * ai, 4), vr(KF[buf] + 4 * ci, 4), acc))
    def block(both):
        nu = 4 if both else 2
        kreads(0, 0); ureads(0, 0, both)
        for k in range(8):
            buf = k & 1
            if k < 7:
                kreads(k + 1, buf ^ 1)
                A('s_waitcnt lgkmcnt(4)')
                ureads(k + 1, buf ^ 1, both)
            else:
                A('s_waitcnt lgkmcnt(0)')
            mf(buf, both)
        for v in (VKA, VKB_, VUB) + ((VUA,) if both else ()):
            A('v_subrev_u32 v%d, 512, v%d' % (v, v))
    if NOCONV:
        A('s_endpgm')
    A('s_mov_b32 s38, 0')
    A.label('cv_loop1')
    block(True)
    A('s_add_u32 s38, s38, 1')
    A('s_cmp_le_u32 s38, s28')
    A('s_cbranch_scc1 cv_loop1')
    A.label('cv_loop2')
    block(False)
    A('s_add_u32 s38, s38, 1')
    A('s_cmp_le_u32 s38, s36')
    A('s_cbranch_scc1 cv_loop2')
    stamp(A, 8)
    A.nop(8)
    A('v_lshlrev_b32 v8, 6, v8')
    A('v_add_u32 v8, v8, v7')
    A('v_lshlrev_b32 v8, 11, v8')
    A('s_lshl_b32 s33, s27, 2')
    A('s_add_u32 s33, s33, 1024')
    for (T, a) in ((28, 0), (36, 2)):
        A('s_lshl_b32 s34, s%d, 19' % T)
        A('s_add_u32 s34, s34, s33')
        for r in range(4):
            d = 80 + 4 * (a // 2) + r
            A('v_cvt_pk_bf16_f32 v%d, v%d, v%d' % (d, ACC + 4 * a + r, ACC + 4 * (a + 1) + r))
            A(('buffer_store_dword v%d, v8, s[20:23], s34 offen' % d) + ST2C)
            A('s_add_u32 s34, s34, 32768')
    if STAMP: A('s_waitcnt vmcnt(0)')
    stamp(A, 9); stamp(A, 10, True)
    stamp_flush(A, 11, 1, 24, 12)
    A('s_endpgm')

def k2(A):
    A('.p2align 8')
    A('.type k2_kernel,@function')
    A.label('k2_kernel')
    A('s_cmp_ge_u32 s2, 256')
    A('s_cbranch_scc1 k2_exit')
    A('s_load_dwordx2 s[4:5], s[0:1], %d' % KA_WS)
    A('s_load_dwordx2 s[6:7], s[0:1], %d' % KA_U)
    A('s_load_dwordx2 s[8:9], s[0:1], %d' % KA_OUT)
    A('v_lshrrev_b32 v2, 6, v0')
    A('v_and_b32 v1, 63, v0')
    A('s_and_b32 s28, s2, 7')
    A('v_readfirstlane_b32 s24, v2')
    A('s_lshr_b32 s29, s2, 3')
    A('s_lshl_b32 s25, s28, 2')
    A('s_and_b32 s30, s29, 3')
    A('s_add_u32 s25, s25, s30')
    A('s_lshr_b32 s26, s29, 2')
    A('s_lshl_b32 s27, s28, 5')
    A('s_add_u32 s27, s27, s29')
    A('s_waitcnt lgkmcnt(0)')
    srd(A, 12, 4, WS_SIZE)
    srd(A, 16, 6, 2048 * 1024)
    srd(A, 20, 8, 2048 * 2048)
    A('s_cmp_ge_u32 s24, 8')
    A('s_cbranch_scc1 k2_conv')
    k2_attn(A)
    if FUSE3: k2_proj(A)
    k2_conv(A)
    A.label('k2_exit')
    A('s_endpgm')

def k3(A):
    A('.p2align 8')
    A('.type k3_kernel,@function')
    A.label('k3_kernel')
    A('s_cmp_ge_u32 s2, 256')
    A('s_cbranch_scc1 k3_exit')
    stamp(A, 0, True); stamp(A, 1)
    A('s_load_dwordx2 s[4:5], s[0:1], %d' % KA_WS)
    A('s_load_dwordx2 s[8:9], s[0:1], %d' % KA_OUT)
    A('v_lshrrev_b32 v2, 6, v0')
    A('v_and_b32 v1, 63, v0')
    A('s_and_b32 s28, s2, 7')
    A('v_readfirstlane_b32 s24, v2')
    A('s_lshr_b32 s29, s2, 3')
    A('s_lshl_b32 s25, s28, 2')
    A('s_and_b32 s30, s29, 3')
    A('s_add_u32 s25, s25, s30')
    A('s_lshr_b32 s26, s29, 2')
    A('v_lshlrev_b32 v2, 4, v1')
    A('s_waitcnt lgkmcnt(0)')
    srd(A, 12, 4, WS_SIZE)
    srd(A, 20, 8, 2048 * 2048)
    A('s_cmp_lt_u32 s24, 4')
    A('s_cbranch_scc1 k3_comp')
    A('s_sub_u32 s31, s24, 4')
    A('s_and_b32 s32, s31, 1')
    A('s_lshl_b32 s33, s25, 1')
    A('s_add_u32 s33, s33, s32')
    A('s_lshl_b32 s33, s33, 15')
    A('s_add_u32 s33, s33, %d' % WS_OF)
    A('s_lshl_b32 s34, s26, 1')
    A('s_add_u32 s34, s34, s32')
    A('s_lshl_b32 s34, s34, 15')
    A('s_add_u32 s34, s34, %d' % WS_WOF)
    A('s_cmp_ge_u32 s31, 2')
    A('s_cselect_b32 s33, s34, s33')
    A('s_lshl_b32 s35, s31, 15')
    A('s_lshl_b32 s36, s25, 1')
    A('s_add_u32 s36, s36, s26')
    def grp(g):
        A('s_add_u32 s37, s36, %d' % g)
        A('s_and_b32 s37, s37, 7')
        A('s_lshl_b32 s37, s37, 12')
        A('s_add_u32 s37, s37, s33')
        for j in range(4):
            A('s_add_u32 m0, s35, %d' % ((4 * g + j) * 1024))
            A('s_nop 0')
            A('buffer_load_dwordx4 v2, s[12:15], s37 offen lds')
            if j < 3: A('s_add_u32 s37, s37, 1024')
    grp(0); grp(1); grp(2)
    stamp(A, 2)
    for g in range(8):
        issued = min(g + 3, 8)
        A('s_waitcnt vmcnt(%d)' % (4 * (issued - g - 1)))
        A('s_barrier')
        if g == 0: stamp(A, 3)
        if g + 3 < 8:
            grp(g + 3)
    stamp(A, 4); stamp(A, 5); stamp(A, 6); stamp(A, 7); stamp(A, 8); stamp(A, 9, True)
    stamp_flush(A, 10, 2, 24, 12)
    A('s_endpgm')
    A.label('k3_comp')
    A('s_lshr_b32 s31, s24, 1')
    A('s_and_b32 s32, s24, 1')
    A('s_lshl_b32 s33, s31, 15')
    A('v_add_u32 v3, s33, v2')
    A('s_lshl_b32 s33, s32, 15')
    A('s_add_u32 s33, s33, 65536')
    A('v_add_u32 v4, s33, v2')
    ACC = 16
    FB = [32, 64]
    stamp(A, 2)
    for g in range(9):
        A('s_waitcnt lgkmcnt(0)')
        if g < 8:
            A('s_barrier')
            if g == 0: stamp(A, 3)
            b = FB[g & 1]
            for j in range(4):
                A('ds_read_b128 %s, v3 offset:%d' % (vr(b + 8 * j, 4), (4 * g + j) * 1024))
                A('ds_read_b128 %s, v4 offset:%d' % (vr(b + 8 * j + 4, 4), (4 * g + j) * 1024))
        if g > 0:
            b = FB[(g - 1) & 1]
            for j in range(4):
                c = '0' if (g == 1 and j == 0) else vr(ACC, 16)
                A('v_mfma_f32_32x32x16_bf16 %s, %s, %s, %s' % (vr(ACC, 16), vr(b + 8 * j + 4, 4), vr(b + 8 * j, 4), c))
    stamp(A, 4)
    A('s_lshl_b32 s37, s31, 5')
    A('s_lshl_b32 s38, s25, 6')
    A('s_add_u32 s37, s37, s38')
    A('s_lshl_b32 s37, s37, 11')
    A('s_lshl_b32 s38, s32, 6')
    A('s_lshl_b32 s39, s26, 7')
    A('s_add_u32 s38, s38, s39')
    A('s_add_u32 s37, s37, s38')
    A('v_and_b32 v5, 31, v1')
    A('v_lshlrev_b32 v5, 11, v5')
    A('v_lshrrev_b32 v6, 5, v1')
    A('v_lshlrev_b32 v6, 5, v6')
    A('v_add_u32 v5, v5, v6')
    A.nop(8)
    for i in range(8):
        A('v_cvt_pk_bf16_f32 v%d, v%d, v%d' % (96 + i, ACC + 2 * i, ACC + 2 * i + 1))
    stamp(A, 5); stamp(A, 6)
    A('buffer_store_dwordx4 v[96:99], v5, s[20:23], s37 offen' + ST3)
    A('buffer_store_dwordx4 v[100:103], v5, s[20:23], s37 offen offset:16' + ST3)
    stamp(A, 7)
    if STAMP: A('s_waitcnt vmcnt(0)')
    stamp(A, 8); stamp(A, 9, True)
    stamp_flush(A, 10, 2, 24, 12)
    A.label('k3_exit')
    A('s_endpgm')

VGPRS = {'k1': 160, 'k2': 112, 'k3': 104}
```
